```python
import torch

def _softmax(x, axis=-1):
    return torch.softmax(x, dim=axis)

def _gelu(x):
    return torch.nn.functional.gelu(x, approximate='tanh')

def _silu(x):
    return torch.nn.functional.silu(x)

def _sigmoid(x):
    return torch.sigmoid(x)

def _layernorm(x, axis=-1, eps=1e-05):
    m = x.mean(dim=axis, keepdim=True)
    v = x.var(dim=axis, keepdim=True, unbiased=False)
    return (x - m) / torch.sqrt(v + eps)

def _scatter_add(tgt, idx, src, axis=0):
    return tgt.clone().index_add_(axis, idx, src)

def _segment_sum(src, seg, n):
    out = torch.zeros((n,) + src.shape[1:], dtype=src.dtype)
    return out.index_add_(0, seg, src)

def _pad(x, pw):
    flat = tuple((v for pair in reversed(pw) for v in pair))
    return torch.nn.functional.pad(x, flat)
kernel_name = 'adaLN_cond__grouped_kv_mqa__swiglu_ffn__prompt'

def setup_inputs():

    _w = lambda a: (lambda t: t.to(torch.bfloat16) if t.is_floating_point() else t)(torch.as_tensor(a))

    def _A_setup():
        B, S, D, H = (1, 2048, 576, 32)
        Dh = D // H
        return {'x': _w((lambda *s: torch.randn(*s, dtype=torch.bfloat16) * 0.05)(B, S, D)), 'wq': _w((lambda *s: torch.randn(*s, dtype=torch.bfloat16) * 0.05)(D, H * Dh)), 'wk': _w((lambda *s: torch.randn(*s, dtype=torch.bfloat16) * 0.05)(D, Dh)), 'wv': _w((lambda *s: torch.randn(*s, dtype=torch.bfloat16) * 0.05)(D, Dh)), 'wo': _w((lambda *s: torch.randn(*s, dtype=torch.bfloat16) * 0.05)(H * Dh, D))}
    _A_in = _A_setup()

    def _B_setup():
        B, S, D, F = (1, 2048, 576, 4608)
        return {'x': _w((lambda *s: torch.randn(*s, dtype=torch.bfloat16) * 0.05)(B, S, D)), 'w_gate': _w((lambda *s: torch.randn(*s, dtype=torch.bfloat16) * 0.05)(D, F)), 'w_up': _w((lambda *s: torch.randn(*s, dtype=torch.bfloat16) * 0.05)(D, F)), 'w_down': _w((lambda *s: torch.randn(*s, dtype=torch.bfloat16) * 0.05)(F, D))}
    _B_in = _B_setup()
    return {'A_x': _A_in['x'], 'A_wq': _A_in['wq'], 'A_wk': _A_in['wk'], 'A_wv': _A_in['wv'], 'A_wo': _A_in['wo'], 'B_x': _B_in['x'], 'B_w_gate': _B_in['w_gate'], 'B_w_up': _B_in['w_up'], 'B_w_down': _B_in['w_down'], 'c': _w((lambda *s: torch.randn(*s, dtype=torch.bfloat16) * 0.1)(1, 576) * 8.0), 'w_mod': _w((lambda *s: torch.randn(*s, dtype=torch.bfloat16) * 0.1)(576, 6 * 576) * 576 ** (-0.5) * 8.0)}

def reference(A_x, A_wq, A_wk, A_wv, A_wo, B_x, B_w_gate, B_w_up, B_w_down, c, w_mod):

    def _A_ref(x, wq, wk, wv, wo):
        B, S, D = x.shape
        H = 32
        Dh = D // H
        q = (lambda x, *d: x.permute(*d))((x @ wq).reshape(B, S, H, Dh), 0, 2, 1, 3)
        k = x @ wk
        v = x @ wv
        scores = torch.einsum('bhqd,bkd->bhqk', q, k) * Dh ** (-0.5)
        p = _softmax(scores, axis=-1)
        o = torch.einsum('bhqk,bkd->bhqd', p, v)
        return (lambda x, *d: x.permute(*d))(o, 0, 2, 1, 3).reshape(B, S, H * Dh) @ wo

    def _B_ref(x, w_gate, w_up, w_down):
        g = _silu(x @ w_gate)
        u = x @ w_up
        return g * u @ w_down
    x = A_x
    mod = (_silu(c) @ w_mod).reshape(c.shape[0], 6, 1, -1)
    sa, ca, ga, sb, cb, gb = (mod[:, 0].clone(), mod[:, 1].clone(), mod[:, 2].clone(), mod[:, 3].clone(), mod[:, 4].clone(), mod[:, 5].clone())
    h = _layernorm(x, axis=-1) * (1 + ca) + sa
    x = x + ga * _A_ref(h, A_wq, A_wk, A_wv, A_wo)
    h = _layernorm(x, axis=-1) * (1 + cb) + sb
    x = x + gb * _B_ref(h, B_w_gate, B_w_up, B_w_down)
    return x
```

```python
import re

class Kern:
    def __init__(self, name, grid, block, lds, nvgpr, nsgpr=102):
        self.name, self.grid, self.block, self.lds = name, grid, block, lds
        self.nvgpr, self.nsgpr = nvgpr, nsgpr
        self.lines = []
        self.nlabel = 0
    def __call__(self, s):
        for ln in s.strip("\n").split("\n"):
            ln = ln.strip()
            if ln:
                self.lines.append(ln)
    def label(self, base):
        self.nlabel += 1
        return f"L_{self.name}_{base}_{self.nlabel}"
    def nop(self, n):
        while n > 0:
            k = min(n, 16)
            self(f"s_nop {k-1}")
            n -= k
    def srd(self, d, base, size, off=0):
        if off:
            self(f"s_add_u32 s{d}, s{base}, {off}")
            self(f"s_addc_u32 s{d+1}, s{base+1}, 0")
        else:
            self(f"s_mov_b32 s{d}, s{base}")
            self(f"s_mov_b32 s{d+1}, s{base+1}")
        self(f"s_mov_b32 s{d+2}, {size}")
        self(f"s_mov_b32 s{d+3}, 0x20000")
    def text(self):
        out = [f".globl {self.name}", ".p2align 8", f".type {self.name},@function", f"{self.name}:"]
        for ln in self.lines:
            if ln.endswith(":") or ln.startswith("."):
                out.append(ln)
            else:
                out.append("  " + ln)
        return "\n".join(out)
    def desc(self):
        acc = (self.nvgpr + 3) // 4 * 4
        return f""".p2align 6
.amdhsa_kernel {self.name}
  .amdhsa_next_free_vgpr {self.nvgpr}
  .amdhsa_next_free_sgpr {self.nsgpr}
  .amdhsa_accum_offset {acc}
  .amdhsa_group_segment_fixed_size 0
  .amdhsa_kernarg_size 112
  .amdhsa_user_sgpr_count 2
  .amdhsa_user_sgpr_kernarg_segment_ptr 1
  .amdhsa_system_sgpr_workgroup_id_x 1
.end_amdhsa_kernel"""

def v(a, n=1):
    return f"v{a}" if n == 1 else f"v[{a}:{a+n-1}]"
def s(a, n=1):
    return f"s{a}" if n == 1 else f"s[{a}:{a+n-1}]"

def f2u(x):
    import struct
    return struct.unpack("<I", struct.pack("<f", x))[0]
def fhex(x):
    return f"0x{f2u(x):08x}"

TRANS = ("v_exp_", "v_log_", "v_rcp_", "v_rsq_", "v_sqrt_", "v_sin_", "v_cos_")
def regs_of(op):
    op = op.strip()
    op = op.lstrip("-").replace("abs(", "").replace(")", "").replace("|", "")
    m = re.fullmatch(r"([vsa])(\d+)", op)
    if m: return {(m.group(1), int(m.group(2)))}
    m = re.fullmatch(r"([vsa])\[(\d+):(\d+)\]", op)
    if m: return {(m.group(1), i) for i in range(int(m.group(2)), int(m.group(3)) + 1)}
    if op == "vcc": return {("s", 106), ("s", 107)}
    if op == "exec": return {("s", 126), ("s", 127)}
    if op == "m0": return {("s", 124)}
    return set()

def parse(ln):
    ln = ln.split(";")[0].strip()
    if not ln or ln.endswith(":") or ln.startswith("."): return None
    parts = ln.split(None, 1)
    mn = parts[0]
    rest = parts[1] if len(parts) > 1 else ""
    rest2 = re.sub(r"quad_perm:\[[^\]]*\]", "", rest)
    rest2 = re.sub(r"op_sel(_hi)?:\[[^\]]*\]", "", rest2)
    rest2 = re.sub(r"neg_(lo|hi):\[[^\]]*\]", "", rest2)
    ops = [o.strip() for o in rest2.split(",")]
    ops2 = []
    for o in ops:
        toks = o.split()
        ops2.append(toks[0] if toks else "")
    return mn, ops2, rest

def rw(mn, ops, rest):
    R = lambda l: set().union(*[regs_of(o) for o in l]) if l else set()
    if mn.startswith("buffer_store") or mn.startswith("global_store") or mn.startswith("ds_write") or mn.startswith("ds_add") or mn.startswith("ds_max"):
        return set(), R(ops)
    if mn.startswith("buffer_load") and " lds" in (" " + rest):
        return set(), R(ops) | {("s", 124)}
    if mn.startswith("buffer_atomic"):
        return (R(ops[:1]) if "sc0" in rest else set()), R(ops)
    if mn.startswith("s_cmp") or mn.startswith("s_cbranch") or mn in ("s_branch", "s_barrier", "s_waitcnt", "s_nop", "s_endpgm", "s_setprio", "s_sleep"):
        return set(), R(ops)
    if mn.startswith("v_cmp"):
        return R(ops[:1]), R(ops[1:])
    if mn.startswith("v_permlane") and "swap" in mn:
        return R(ops), R(ops)
    if mn.startswith("v_add_co") or mn.startswith("v_addc_co") or mn.startswith("v_sub_co"):
        return R(ops[:2]), R(ops[2:])
    w = R(ops[:1]); r = R(ops[1:])
    if mn.startswith("v_fmac") or mn.startswith("v_dot2c") or "d16" in mn or "UNUSED_PRESERVE" in rest or "_dpp" in mn:
        r |= w
    if mn.startswith("s_and_saveexec") or mn.startswith("s_or_saveexec"):
        w |= regs_of("exec"); r |= regs_of("exec")
    return w, r

def check_hazards(lines, name=""):
    errs = []
    hist = []
    pos = 0
    for idx, ln in enumerate(lines):
        p = parse(ln)
        if p is None: continue
        mn, ops, rest = p
        w, r = rw(mn, ops, rest)
        is_mfma = mn.startswith("v_mfma")
        is_valu = mn.startswith("v_") and not is_mfma
        is_vmem = mn.startswith("buffer_") or mn.startswith("global_")
        is_ds = mn.startswith("ds_")
        passes = 0
        if is_mfma:
            passes = 8 if "32x32" in mn else 4
        def need(h, n, why):
            d = pos - h[0] - 1
            if d < n:
                errs.append(f"{name}: line {idx}: '{ln}' needs {n} ws after '{h[7]}' ({why}), has {d}")
        for h in hist[-40:]:
            hpos, hmn, hw, hr, hkind, hpass, hC, hln = h
            if hkind == "valu":
                vw = {x for x in hw if x[0] in "va"}
                sw = {x for x in hw if x[0] == "s"}
                if is_mfma and vw & r: need(h, 2, "valu->mfma")
                if (mn.startswith("v_readfirstlane") or mn.startswith("v_readlane")) and vw & r: need(h, 1, "valu->readlane")
                if (mn.startswith("v_permlane") or "_dpp" in mn) and vw & r: need(h, 2, "valu->permlane/dpp")
                if is_vmem and sw & r: need(h, 5, "valu sgpr->vmem")
                if is_valu and sw & r: need(h, 2, "valu sgpr->valu")
                if is_valu and (mn.startswith("v_cndmask") and ops[-1] == "vcc" or "addc" in mn) and (sw & regs_of("vcc")): need(h, 2, "vcc->cndmask")
                if hmn.startswith(TRANS) and is_valu and not mn.startswith(TRANS) and vw & r: need(h, 1, "trans->valu")
                if hmn.startswith(TRANS) and (is_mfma) and vw & r: need(h, 2, "trans->mfma")
                if ("sdwa" in hmn) and is_valu and vw & (r | w): need(h, 1, "sdwa->valu")
                if (sw & regs_of("exec")) and is_mfma: need(h, 4, "valu exec->mfma")
            if hkind == "mfma":
                n = 8 if hpass == 4 else 12
                if is_mfma:
                    ab = regs_of(ops[1]) | regs_of(ops[2])
                    c = regs_of(ops[3])
                    if hw & ab: need(h, n, "mfma D->mfma A/B")
                    if hw & c and (hw != c or hpass != passes): need(h, 6 if hpass == 4 else 10, "mfma D->mfma C partial")
                    if hw & w and not (hw == c and hw == w): need(h, n, "mfma D WAW mfma")
                else:
                    if (is_valu or is_vmem or is_ds) and hw & (r | w): need(h, n, "mfma D->other")
                    if is_valu and hC & w: need(h, 3 if hpass == 4 else 7, "mfma C WAR valu")
            if hkind == "salu":
                if ("s", 124) in hw and is_vmem and " lds" in (" " + rest): need(h, 1, "m0->lds dma")
            if hkind == "store4" and is_valu and (hC & w): need(h, 2, "wide store WAR")
        kind = "mfma" if is_mfma else "valu" if is_valu else "vmem" if is_vmem else "ds" if is_ds else "salu"
        C = regs_of(ops[3]) if is_mfma else set()
        if is_vmem and "store" in mn and ("x4" in mn or "x3" in mn):
            kind = "store4"; C = regs_of(ops[0])
        hist.append((pos, mn, w, r, kind, passes, C, ln))
        if mn == "s_nop":
            pos += int(ops[0]) + 1
        else:
            pos += 1
    return errs
```

```python
from fw import *
from layout import *
LOG2E = 1.4426950408889634

def bf16r(k, dst, src):
    k(f"v_cvt_pk_bf16_f32 v{dst}, v{src}, v{src}")
    k(f"v_lshlrev_b32 v{dst}, 16, v{dst}")

def gen_k1():
    NG, NPQ, NPO, NLN = 224, 180, 162, 64
    k = Kern("prep_kernel", NG + NPQ + NPO + NLN, 256, 1024, 128)
    k("""
    s_load_dwordx8 s[4:11], s[0:1], 0
    s_load_dwordx2 s[12:13], s[0:1], 32
    s_load_dwordx4 s[16:19], s[0:1], 72
    s_load_dwordx2 s[20:21], s[0:1], 104
    v_and_b32 v1, 63, v0
    v_lshrrev_b32 v2, 6, v0
    s_nop 0
    v_readfirstlane_b32 s3, v2
    """)
    k(f"s_cmp_ge_u32 s2, {NG+NPQ+NPO+NLN}")
    k("s_cbranch_scc1 L_k1_end")
    k("s_waitcnt lgkmcnt(0)")
    k(f"s_cmp_ge_u32 s2, {NG+NPQ+NPO}")
    k("s_cbranch_scc1 L_k1_ln")
    k(f"s_cmp_ge_u32 s2, {NG}")
    k("s_cbranch_scc1 L_k1_pack")
    k("""
    s_and_b32 s22, s2, 7
    s_lshr_b32 s23, s2, 3
    s_and_b32 s23, s23, 3
    s_lshr_b32 s24, s2, 5
    s_lshl_b32 s24, s24, 3
    s_add_u32 s24, s24, s22
    s_cmp_ge_u32 s24, 54
    s_cbranch_scc1 L_k1_end
    s_lshl_b32 s24, s24, 2
    s_add_u32 s24, s24, s23
    s_lshl_b32 s25, s24, 4
    """)
    k.srd(28, 18, 576 * 6912)
    k.srd(32, 16, 1152)
    k.srd(36, 20, MOD_SZ, MOD)
    k("""
    v_and_b32 v3, 3, v0
    v_lshrrev_b32 v4, 2, v0
    s_movk_i32 s26, 6912
    v_mul_lo_u32 v5, v4, s26
    v_lshl_add_u32 v5, v3, 3, v5
    v_lshlrev_b32 v6, 1, v4
    s_lshl_b32 s26, s25, 1
    """)
    for p in range(9):
        k(f"buffer_load_ushort v{10+p}, v6, s[32:35], 0 offen offset:{128*p}")
    for p in range(9):
        k(f"buffer_load_dwordx2 v[{20+2*p}:{21+2*p}], v5, s[28:31], s26 offen")
        if p < 8: k(f"s_add_u32 s26, s26, {64*6912}")
    k("v_mov_b32 v40, 0\nv_mov_b32 v41, 0\nv_mov_b32 v42, 0\nv_mov_b32 v43, 0")
    k(f"s_mov_b32 s27, {fhex(-LOG2E)}")
    k("s_waitcnt vmcnt(9)")
    for p in range(9):
        c = 10 + p
        k(f"v_lshlrev_b32 v{c}, 16, v{c}")
        k(f"v_mul_f32 v44, s27, v{c}")
        k(f"v_exp_f32 v44, v44")
        k("s_nop 0")
        k(f"v_add_f32 v44, 1.0, v44")
        k(f"v_rcp_f32 v44, v44")
        k("s_nop 0")
        k(f"v_mul_f32 v{c}, v{c}, v44")
        bf16r(k, c, c)
    for p in range(9):
        k(f"s_waitcnt vmcnt({8-p})")
        for d in range(2):
            w = 20 + 2 * p + d
            k(f"v_lshlrev_b32 v44, 16, v{w}")
            k(f"v_and_b32 v45, 0xffff0000, v{w}")
            k(f"v_fmac_f32 v{40+2*d}, v{10+p}, v44")
            k(f"v_fmac_f32 v{41+2*d}, v{10+p}, v45")
    k.nop(2)
    for sh in (4, 8):
        for i in range(4):
            k(f"v_add_f32_dpp v{40+i}, v{40+i}, v{40+i} row_ror:{sh} row_mask:0xf bank_mask:0xf")
        k.nop(2)
    k("""
    v_lshrrev_b32 v7, 4, v0
    v_lshlrev_b32 v7, 6, v7
    v_lshl_add_u32 v7, v3, 4, v7
    v_and_b32 v8, 15, v0
    v_cmp_gt_u32 vcc, 4, v8
    s_and_saveexec_b64 s[40:41], vcc
    ds_write_b128 v7, v[40:43]
    s_mov_b64 exec, s[40:41]
    s_waitcnt lgkmcnt(0)
    s_barrier
    s_cmp_lg_u32 s3, 0
    s_cbranch_scc1 L_k1_end
    v_cmp_gt_u32 vcc, 16, v0
    s_and_saveexec_b64 s[40:41], vcc
    v_lshlrev_b32 v7, 2, v0
    """)
    for p in range(16):
        k(f"ds_read_b32 v{50+p}, v7 offset:{64*p}")
    k("s_waitcnt lgkmcnt(0)")
    for st in (8, 4, 2, 1):
        for i in range(st):
            k(f"v_add_f32 v{50+i}, v{50+i}, v{50+i+st}")
    bf16r(k, 50, 50)
    k("""
    s_mul_i32 s26, s24, 1821
    s_lshr_b32 s26, s26, 16
    s_cmp_eq_u32 s26, 1
    s_cselect_b32 s27, 1, 0
    s_cmp_eq_u32 s26, 4
    s_cselect_b32 s27, 1, s27
    s_cmp_eq_u32 s27, 0
    s_cbranch_scc1 L_k1_g_store
    v_add_f32 v50, 1.0, v50
    """)
    bf16r(k, 50, 50)
    k("""
    L_k1_g_store:
    s_lshl_b32 s26, s25, 2
    buffer_store_dword v50, v7, s[36:39], s26 offen
    s_branch L_k1_end
    """)
    k(f"""
    L_k1_pack:
    s_sub_u32 s22, s2, {NG}
    s_lshl_b32 s22, s22, 2
    s_add_u32 s22, s22, s3
    v_and_b32 v3, 15, v1
    v_lshrrev_b32 v4, 4, v1
    v_mov_b32 v10, 0
    v_mov_b32 v11, 0
    v_mov_b32 v12, 0
    v_mov_b32 v13, 0
    s_cmp_ge_u32 s22, 720
    s_cbranch_scc1 L_k1_pack_o
    """)
    k.srd(36, 20, WQKV_SZ, WQKV)
    k.srd(28, 6, 576 * 1152)
    k("""
    s_mul_i32 s23, s22, 3641
    s_lshr_b32 s23, s23, 16
    s_mul_i32 s24, s23, 18
    s_sub_u32 s24, s22, s24
    s_cmp_ge_u32 s23, 36
    s_cbranch_scc1 L_k1_pack_kv
    s_branch L_k1_pack_big
    L_k1_pack_o:
    s_sub_u32 s22, s22, 720
    """)
    k.srd(36, 20, WO_SZ, WOP)
    k.srd(28, 12, 576 * 1152)
    k("""
    s_mul_i32 s23, s22, 3641
    s_lshr_b32 s23, s23, 16
    s_mul_i32 s24, s23, 18
    s_sub_u32 s24, s22, s24
    L_k1_pack_big:
    v_lshlrev_b32 v5, 3, v4
    s_lshl_b32 s25, s24, 5
    v_add_u32 v5, s25, v5
    s_movk_i32 s26, 1152
    v_mul_lo_u32 v5, v5, s26
    v_lshl_add_u32 v5, v3, 1, v5
    s_lshl_b32 s25, s23, 5
    s_add_u32 s26, s25, 4608
    """)
    for j in range(8):
        so = "s25" if j < 4 else "s26"
        k(f"buffer_load_ushort v{20+j}, v5, s[28:31], {so} offen offset:{(j&3)*1152}")
    k("s_branch L_k1_pack_st")
    k("""
    L_k1_pack_kv:
    s_cmp_ge_u32 s23, 38
    s_cselect_b32 s28, s10, s8
    s_cselect_b32 s29, s11, s9
    s_mov_b32 s30, 20736
    s_and_b32 s25, s23, 1
    s_lshl_b32 s25, s25, 4
    v_add_u32 v6, s25, v3
    v_lshlrev_b32 v5, 3, v4
    s_lshl_b32 s25, s24, 5
    v_add_u32 v5, s25, v5
    v_mul_u32_u24 v5, 36, v5
    v_lshl_add_u32 v5, v6, 1, v5
    v_cmp_gt_u32 vcc, 18, v6
    v_mov_b32 v7, 0x40000000
    s_nop 0
    v_cndmask_b32 v5, v7, v5, vcc
    """)
    for j in range(8):
        k(f"buffer_load_ushort v{20+j}, v5, s[28:31], 0 offen offset:{j*36}")
    k("""
    L_k1_pack_st:
    v_lshlrev_b32 v6, 4, v1
    s_lshl_b32 s25, s22, 10
    s_waitcnt vmcnt(0)
    v_lshl_or_b32 v10, v21, 16, v20
    v_lshl_or_b32 v11, v23, 16, v22
    v_lshl_or_b32 v12, v25, 16, v24
    v_lshl_or_b32 v13, v27, 16, v26
    buffer_store_dwordx4 v[10:13], v6, s[36:39], s25 offen
    s_branch L_k1_end
    """)
    k(f"""
    L_k1_ln:
    s_sub_u32 s22, s2, {NG+NPQ+NPO}
    s_mul_i32 s23, s22, {32*1152}
    v_and_b32 v3, 7, v0
    v_lshrrev_b32 v4, 3, v0
    v_mul_u32_u24 v5, 1152, v4
    v_lshl_add_u32 v5, v3, 4, v5
    """)
    k.srd(28, 4, S * 1152)
    k.srd(36, 20, ST1_SZ, ST1)
    for j in range(9):
        k(f"buffer_load_dwordx4 v[{12+4*j}:{15+4*j}], v5, s[28:31], s23 offen offset:{128*j}")
    for j in range(9):
        k(f"s_waitcnt vmcnt({8-j})")
        for d in range(4):
            k(f"v_lshlrev_b32 v{48+8*j+2*d}, 16, v{12+4*j+d}")
            k(f"v_and_b32 v{49+8*j+2*d}, 0xffff0000, v{12+4*j+d}")
    def red8(r):
        k.nop(2)
        k(f"v_add_f32_dpp v{r}, v{r}, v{r} quad_perm:[1,0,3,2] row_mask:0xf bank_mask:0xf")
        k.nop(2)
        k(f"v_add_f32_dpp v{r}, v{r}, v{r} quad_perm:[2,3,0,1] row_mask:0xf bank_mask:0xf")
        k.nop(2)
        k(f"v_add_f32_dpp v{r}, v{r}, v{r} row_half_mirror row_mask:0xf bank_mask:0xf")
    for a in range(4):
        k(f"v_add_f32 v{8+a}, v{48+a}, v{52+a}")
    for i in range(8, 72):
        k(f"v_add_f32 v{8+i%4}, v{8+i%4}, v{48+i}")
    k("v_add_f32 v8, v8, v9\nv_add_f32 v10, v10, v11\nv_add_f32 v8, v8, v10")
    red8(8)
    k(f"v_mul_f32 v6, {fhex(1.0/576)}, v8")
    for i in range(72):
        k(f"v_sub_f32 v{48+i}, v{48+i}, v6")
    for a in range(4):
        k(f"v_mul_f32 v{8+a}, v{48+a}, v{48+a}")
    for i in range(4, 72):
        k(f"v_fmac_f32 v{8+i%4}, v{48+i}, v{48+i}")
    k("v_add_f32 v8, v8, v9\nv_add_f32 v10, v10, v11\nv_add_f32 v8, v8, v10")
    red8(8)
    k(f"v_mul_f32 v8, {fhex(1.0/576)}, v8")
    bf16r(k, 8, 8)
    k(f"v_add_f32 v8, {fhex(1e-5)}, v8")
    bf16r(k, 8, 8)
    k("v_sqrt_f32 v8, v8\ns_nop 0")
    bf16r(k, 8, 8)
    k("v_rcp_f32 v8, v8")
    bf16r(k, 6, 6)
    k("""
    v_mul_f32 v9, v6, v8
    v_sub_f32 v9, 0, v9
    v_lshlrev_b32 v7, 3, v4
    s_lshl_b32 s23, s22, 8
    v_cmp_eq_u32 vcc, 0, v3
    s_and_saveexec_b64 s[40:41], vcc
    buffer_store_dwordx2 v[8:9], v7, s[36:39], s23 offen
    L_k1_end:
    s_endpgm
    """)
    return k
```

```python
from fw import *
from layout import *
from k1 import bf16r, LOG2E
QSCALE = (18 ** -0.5) * LOG2E

def small_gemm(k, Wbase, Tbase, nT, acc, A0, A1, swap):
    seq = [(ks, tt) for ks in range(18) for tt in range(2)]
    def rd(i):
        ks, tt = seq[i]
        a = A0 if ks % 2 == 0 else A1
        b = Tbase + 4 * (i % nT)
        k(f"ds_read_b128 v[{b}:{b+3}], v{a} offset:{(ks>>1)*128 + tt*18432}")
    for i in range(min(nT, len(seq))):
        rd(i)
    for i, (ks, tt) in enumerate(seq):
        issued = min(len(seq), i + nT)
        k(f"s_waitcnt lgkmcnt({issued - i - 1})")
        if tt == 0:
            k(f"s_waitcnt vmcnt({17-ks})")
        b = Tbase + 4 * (i % nT)
        w = Wbase + 4 * ks
        c = "0" if ks == 0 else f"v[{acc+4*tt}:{acc+4*tt+3}]"
        if swap:
            k(f"v_mfma_f32_16x16x32_bf16 v[{acc+4*tt}:{acc+4*tt+3}], v[{b}:{b+3}], v[{w}:{w+3}], {c}")
        else:
            k(f"v_mfma_f32_16x16x32_bf16 v[{acc+4*tt}:{acc+4*tt+3}], v[{w}:{w+3}], v[{b}:{b+3}], {c}")
        if i + nT < len(seq):
            rd(i + nT)
    k.nop(8)

def gemm_addr(k):
    k("""
    v_and_b32 v3, 15, v1
    v_lshrrev_b32 v4, 4, v1
    v_and_b32 v7, 7, v3
    v_xor_b32 v5, v4, v7
    v_xor_b32 v6, 4, v5
    v_mul_u32_u24 v7, 1152, v3
    v_lshl_add_u32 v5, v5, 4, v7
    v_lshl_add_u32 v6, v6, 4, v7
    """)

def gen_k2():
    k = Kern("qkv_kernel", 256 + 144, 640, 36864, 144)
    k("""
    s_load_dwordx2 s[4:5], s[0:1], 0
    s_load_dwordx4 s[8:11], s[0:1], 48
    s_load_dwordx2 s[20:21], s[0:1], 104
    v_and_b32 v1, 63, v0
    v_lshrrev_b32 v2, 6, v0
    s_nop 0
    v_readfirstlane_b32 s3, v2
    s_cmp_ge_u32 s2, 400
    s_cbranch_scc1 L_k2_end
    s_movk_i32 s22, 911
    v_mul_lo_u32 v2, v0, s22
    v_lshrrev_b32 v2, 16, v2
    v_mul_u32_u24 v3, 72, v2
    v_sub_u32 v3, v0, v3
    s_waitcnt lgkmcnt(0)
    s_cmp_ge_u32 s2, 256
    s_cbranch_scc1 L_k2_side
    s_and_b32 s22, s2, 7
    s_lshl_b32 s22, s22, 3
    s_lshr_b32 s23, s2, 3
    s_and_b32 s23, s23, 7
    s_add_u32 s22, s22, s23
    s_lshr_b32 s23, s2, 6
    s_mul_i32 s23, s23, 10
    s_add_u32 s23, s23, s3
    """)
    k.srd(24, 4, S * 1152)
    k.srd(28, 20, ST1_SZ, ST1)
    k.srd(32, 20, MOD_SZ, MOD)
    k.srd(36, 20, WQKV_SZ, WQKV)
    k("s_cmp_eq_u32 s3, 9\ns_cbranch_scc1 L_k2_wload")
    k("""
    v_mul_u32_u24 v4, 1152, v2
    v_lshl_add_u32 v4, v3, 4, v4
    s_mul_i32 s40, s22, 36864
    v_lshlrev_b32 v5, 3, v2
    s_lshl_b32 s41, s22, 8
    v_lshlrev_b32 v6, 5, v3
    """)
    for p in range(4):
        k(f"buffer_load_dwordx4 v[{80+4*p}:{83+4*p}], v4, s[24:27], s40 offen")
        if p < 3: k("s_add_u32 s40, s40, 9216")
    for p in range(4):
        k(f"buffer_load_dwordx2 v[{96+2*p}:{97+2*p}], v5, s[28:31], s41 offen offset:{64*p}")
    k("""
    buffer_load_dwordx4 v[104:107], v6, s[32:35], 0 offen
    buffer_load_dwordx4 v[108:111], v6, s[32:35], 0 offen offset:16
    buffer_load_dwordx4 v[112:115], v6, s[32:35], 0 offen offset:2304
    buffer_load_dwordx4 v[116:119], v6, s[32:35], 0 offen offset:2320
    L_k2_wload:
    v_lshlrev_b32 v7, 4, v1
    s_mul_i32 s40, s23, 18432
    """)
    for ks in range(18):
        k(f"buffer_load_dwordx4 v[{8+4*ks}:{11+4*ks}], v7, s[36:39], s40 offen offset:{(ks&3)*1024}")
        if ks & 3 == 3: k("s_add_u32 s40, s40, 4096")
    k("s_cmp_eq_u32 s3, 9\ns_cbranch_scc1 L_k2_bar")
    k("""
    v_xor_b32 v5, v3, v2
    v_mul_u32_u24 v4, 1152, v2
    v_lshl_add_u32 v4, v5, 4, v4
    s_waitcnt vmcnt(18)
    """)
    for p in range(4):
        for d in range(4):
            x = 80 + 4 * p + d
            k(f"v_lshlrev_b32 v120, 16, v{x}")
            k(f"v_and_b32 v121, 0xffff0000, v{x}")
            k(f"v_fma_f32 v120, v120, v{96+2*p}, v{97+2*p}")
            k(f"v_fma_f32 v121, v121, v{96+2*p}, v{97+2*p}")
            k(f"v_fma_f32 v120, v120, v{112+2*d}, v{104+2*d}")
            k(f"v_fma_f32 v121, v121, v{113+2*d}, v{105+2*d}")
            k(f"v_cvt_pk_bf16_f32 v{x}, v120, v121")
        k(f"ds_write_b128 v4, v[{80+4*p}:{83+4*p}] offset:{9216*p}")
    k("L_k2_bar:")
    gemm_addr(k)
    k("s_waitcnt lgkmcnt(0)\ns_barrier")
    k("s_cmp_ge_u32 s23, 38\ns_cbranch_scc1 L_k2_v")
    small_gemm(k, 8, 80, 12, 128, 5, 6, False)
    k("s_cmp_ge_u32 s23, 36\ns_cbranch_scc1 L_k2_k")
    k.srd(24, 20, Q_SZ, Q)
    k(f"""
    s_mov_b32 s40, {fhex(QSCALE)}
    v_mul_u32_u24 v7, 1152, v3
    v_lshl_add_u32 v7, v4, 3, v7
    s_mul_i32 s41, s22, 36864
    s_lshl_b32 s42, s23, 5
    s_add_u32 s41, s41, s42
    s_add_u32 s42, s41, 18432
    """)
    for i in range(8):
        k(f"v_mul_f32 v{128+i}, s40, v{128+i}")
    for tt in range(2):
        k(f"v_cvt_pk_bf16_f32 v{80+2*tt}, v{128+4*tt}, v{129+4*tt}")
        k(f"v_cvt_pk_bf16_f32 v{81+2*tt}, v{130+4*tt}, v{131+4*tt}")
    k("buffer_store_dwordx2 v[80:81], v7, s[24:27], s41 offen")
    k("buffer_store_dwordx2 v[82:83], v7, s[24:27], s42 offen")
    k("s_branch L_k2_end")
    k("L_k2_k:")
    k.srd(24, 20, KV_SZ, KV)
    k.srd(28, 20, KMAX_SZ, KMAX)
    k(f"s_mul_i32 s41, s22, {KV_TILE}")
    for tt in range(2):
        k(f"v_cvt_pk_bf16_f32 v{80+2*tt}, v{128+4*tt}, v{129+4*tt}")
        k(f"v_cvt_pk_bf16_f32 v{81+2*tt}, v{130+4*tt}, v{131+4*tt}")
    for tt in range(2):
        k(f"v_mov_b32 v{90+tt}, 0")
        k(f"v_dot2c_f32_bf16 v{90+tt}, v{80+2*tt}, v{80+2*tt}")
        k(f"v_dot2c_f32_bf16 v{90+tt}, v{81+2*tt}, v{81+2*tt}")
    k("""
    v_xor_b32 v92, 16, v1
    v_lshlrev_b32 v92, 2, v92
    v_xor_b32 v93, 32, v1
    v_lshlrev_b32 v93, 2, v93
    s_nop 1
    ds_bpermute_b32 v94, v92, v90
    ds_bpermute_b32 v95, v92, v91
    s_waitcnt lgkmcnt(0)
    v_add_f32 v90, v90, v94
    v_add_f32 v91, v91, v95
    ds_bpermute_b32 v94, v93, v90
    ds_bpermute_b32 v95, v93, v91
    s_waitcnt lgkmcnt(0)
    v_add_f32 v90, v90, v94
    v_add_f32 v91, v91, v95
    v_max_f32 v90, v90, v91
    """)
    for sh in (1, 2, 4, 8):
        k.nop(2)
        k(f"v_max_f32_dpp v90, v90, v90 row_ror:{sh} row_mask:0xf bank_mask:0xf")
    k("""
    s_lshl_b32 s42, s22, 3
    s_cmp_eq_u32 s23, 37
    s_cbranch_scc1 L_k2_k1
    v_lshlrev_b32 v7, 5, v3
    v_lshl_add_u32 v7, v4, 3, v7
    buffer_store_dwordx2 v[80:81], v7, s[24:27], s41 offen
    buffer_store_dwordx2 v[82:83], v7, s[24:27], s41 offen offset:512
    v_mov_b32 v7, 0
    v_cmp_eq_u32 vcc, 0, v1
    s_and_saveexec_b64 s[44:45], vcc
    buffer_store_dword v90, v7, s[28:31], s42 offen
    s_branch L_k2_end
    L_k2_k1:
    v_mov_b32 v81, 0x3f803f80
    v_mov_b32 v83, 0x3f803f80
    v_lshlrev_b32 v7, 3, v3
    v_cmp_gt_u32 vcc, 16, v1
    s_and_saveexec_b64 s[44:45], vcc
    buffer_store_dwordx2 v[80:81], v7, s[24:27], s41 offen offset:1024
    buffer_store_dwordx2 v[82:83], v7, s[24:27], s41 offen offset:1152
    v_mov_b32 v7, 0
    v_cmp_eq_u32 vcc, 0, v1
    s_and_saveexec_b64 s[44:45], vcc
    buffer_store_dword v90, v7, s[28:31], s42 offen offset:4
    s_branch L_k2_end
    """)
    k("L_k2_v:")
    small_gemm(k, 8, 80, 12, 128, 5, 6, True)
    k.srd(24, 20, KV_SZ, KV)
    k(f"s_mul_i32 s41, s22, {KV_TILE}")
    for tt in range(2):
        k(f"v_cvt_pk_bf16_f32 v{80+2*tt}, v{128+4*tt}, v{129+4*tt}")
        k(f"v_cvt_pk_bf16_f32 v{81+2*tt}, v{130+4*tt}, v{131+4*tt}")
    k("""
    v_and_b32 v8, 1, v4
    v_lshrrev_b32 v9, 1, v4
    v_lshlrev_b32 v7, 5, v3
    v_lshl_add_u32 v7, v8, 4, v7
    v_lshl_add_u32 v7, v9, 3, v7
    s_cmp_eq_u32 s23, 39
    s_cbranch_scc1 L_k2_v1
    buffer_store_dwordx2 v[80:81], v7, s[24:27], s41 offen offset:1280
    buffer_store_dwordx2 v[82:83], v7, s[24:27], s41 offen offset:1888
    s_branch L_k2_end
    L_k2_v1:
    v_mov_b32 v10, 0x3f803f80
    v_cmp_eq_u32 vcc, 2, v3
    s_nop 1
    v_cndmask_b32 v80, v80, v10, vcc
    v_cndmask_b32 v81, v81, v10, vcc
    v_cndmask_b32 v82, v82, v10, vcc
    v_cndmask_b32 v83, v83, v10, vcc
    v_cmp_gt_u32 vcc, 3, v3
    s_and_saveexec_b64 s[44:45], vcc
    buffer_store_dwordx2 v[80:81], v7, s[24:27], s41 offen offset:1792
    buffer_store_dwordx2 v[82:83], v7, s[24:27], s41 offen offset:2400
    s_branch L_k2_end
    """)
    k("""
    L_k2_side:
    s_sub_u32 s22, s2, 256
    s_cmp_ge_u32 s22, 72
    s_cselect_b32 s23, 1, 0
    s_cselect_b32 s24, s10, s8
    s_cselect_b32 s25, s11, s9
    s_mov_b32 s26, 5308416
    s_mov_b32 s27, 0x20000
    s_mul_i32 s40, s23, 72
    s_sub_u32 s22, s22, s40
    """)
    k.srd(32, 20, MOD_SZ - 6912, MOD + 6912)
    k.srd(36, 20, CS_SZ, CS)
    k("s_cmp_eq_u32 s3, 9\ns_cbranch_scc1 L_k2_sbar")
    k("""
    v_and_b32 v3, 7, v0
    v_lshrrev_b32 v2, 3, v0
    s_movk_i32 s40, 9216
    v_mul_lo_u32 v4, v2, s40
    v_lshl_add_u32 v4, v3, 4, v4
    s_lshl_b32 s40, s22, 7
    v_lshlrev_b32 v5, 2, v2
    v_add_u32 v6, 2304, v5
    """)
    for p in range(8):
        k(f"buffer_load_dword v{48+p}, v5, s[32:35], 0 offen offset:{288*p}")
        k(f"buffer_load_dword v{56+p}, v6, s[32:35], 0 offen offset:{288*p}")
    for p in range(8):
        k(f"buffer_load_dwordx4 v[{8+4*p}:{11+4*p}], v4, s[24:27], s40 offen")
        if p < 7: k(f"s_add_u32 s40, s40, {72*9216}")
    for i in range(16):
        k(f"v_mov_b32 v{64+i}, 0")
    for p in range(8):
        k(f"s_waitcnt vmcnt({7-p})")
        for d in range(4):
            w = 8 + 4 * p + d
            k(f"v_lshlrev_b32 v80, 16, v{w}")
            k(f"v_and_b32 v81, 0xffff0000, v{w}")
            k(f"v_fmac_f32 v{64+2*d}, v{56+p}, v80")
            k(f"v_fmac_f32 v{65+2*d}, v{56+p}, v81")
            k(f"v_fmac_f32 v{72+2*d}, v{48+p}, v80")
            k(f"v_fmac_f32 v{73+2*d}, v{48+p}, v81")
    k("""
    v_lshlrev_b32 v5, 9, v2
    v_lshl_add_u32 v5, v3, 5, v5
    ds_write_b128 v5, v[64:67]
    ds_write_b128 v5, v[68:71] offset:16
    ds_write_b128 v5, v[72:75] offset:256
    ds_write_b128 v5, v[76:79] offset:272
    L_k2_sbar:
    s_waitcnt lgkmcnt(0)
    s_barrier
    s_cmp_ge_u32 s3, 2
    s_cbranch_scc1 L_k2_end
    v_lshlrev_b32 v5, 2, v0
    """)
    for r in range(72):
        k(f"ds_read_b32 v{8+r}, v5 offset:{512*r}")
        if r % 12 == 11: k("s_waitcnt lgkmcnt(0)")
    for a in range(4):
        for i in range(a + 4, 72, 4):
            k(f"v_add_f32 v{8+a}, v{8+a}, v{8+i}")
    k(f"""
    v_add_f32 v8, v8, v9
    v_add_f32 v10, v10, v11
    v_add_f32 v8, v8, v10
    s_lshl_b32 s40, s23, 1
    s_add_u32 s40, s40, s3
    s_mul_i32 s40, s40, {F*4}
    s_lshl_b32 s41, s22, 8
    s_add_u32 s40, s40, s41
    v_lshlrev_b32 v5, 2, v1
    buffer_store_dword v8, v5, s[36:39], s40 offen
    L_k2_end:
    s_endpgm
    """)
    return k
```

```python
from fw import *
from layout import *

def gen_k3():
    k = Kern("attn_kernel", 256, 512, 163840, 128)
    NT = 64
    Q1, Q2 = 8, 12
    K1 = [16, 20]; K2 = [24, 28]
    V = [[32, 36], [40, 44]]
    Sb = [48, 64]
    P = 80
    OA = 88
    AK1 = [104, 105, 106]; AK2 = [107, 108, 109]; AV = [110, 111, 112]
    GRP = 24
    k("""
    s_load_dwordx2 s[20:21], s[0:1], 104
    v_and_b32 v1, 63, v0
    v_lshrrev_b32 v2, 6, v0
    s_nop 0
    v_readfirstlane_b32 s3, v2
    s_cmp_ge_u32 s2, 256
    s_cbranch_scc1 L_k3_end
    s_lshl_b32 s22, s2, 3
    s_add_u32 s22, s22, s3
    s_mul_i32 s22, s22, 1152
    v_and_b32 v3, 31, v1
    v_lshrrev_b32 v4, 5, v1
    v_mul_u32_u24 v5, 36, v3
    v_lshl_add_u32 v5, v4, 4, v5
    v_lshlrev_b32 v6, 3, v1
    v_lshlrev_b32 v7, 4, v1
    s_waitcnt lgkmcnt(0)
    """)
    k.srd(24, 20, Q_SZ, Q)
    k.srd(28, 20, KMAX_SZ, KMAX)
    k.srd(32, 20, KV_SZ, KV)
    k.srd(36, 20, O_SZ, O)
    k(f"""
    buffer_load_dwordx4 v[{Q1}:{Q1+3}], v5, s[24:27], s22 offen
    v_mul_u32_u24 v113, 36, v3
    buffer_load_dword v{Q2}, v113, s[24:27], s22 offen offset:32
    buffer_load_dwordx2 v[114:115], v6, s[28:31], 0 offen
    s_lshl_b32 s23, s3, 10
    """)
    for j in range(20):
        k(f"s_mov_b32 m0, s23")
        k("s_nop 0")
        k(f"buffer_load_dwordx4 v7, s[32:35], s23 offen lds")
        if j < 19: k("s_add_u32 s23, s23, 8192")
    k(f"""
    v_lshlrev_b32 v{AK1[0]}, 5, v3
    v_lshl_add_u32 v{AK1[0]}, v4, 4, v{AK1[0]}
    v_lshlrev_b32 v{AK2[0]}, 3, v3
    v_add_u32 v{AK2[0]}, 1024, v{AK2[0]}
    v_subrev_u32 v116, 20, v3
    v_subrev_u32 v117, 12, v3
    v_cmp_gt_u32 vcc, 24, v3
    s_nop 1
    v_cndmask_b32 v116, v117, v116, vcc
    v_min_u32 v116, 18, v116
    v_cmp_gt_u32 vcc, 19, v3
    s_nop 1
    v_cndmask_b32 v116, v116, v3, vcc
    v_cmp_eq_u32 vcc, 19, v3
    v_mov_b32 v117, 18
    s_nop 0
    v_cndmask_b32 v116, v116, v117, vcc
    v_lshlrev_b32 v{AV[0]}, 5, v116
    v_lshl_add_u32 v{AV[0]}, v4, 4, v{AV[0]}
    v_add_u32 v{AV[0]}, 1280, v{AV[0]}
    """)
    for g in (1, 2):
        for A in (AK1, AK2, AV):
            k(f"v_add_u32 v{A[g]}, {g*GRP*KV_TILE}, v{A[0]}")
    for r in (Q2 + 1, Q2 + 2, Q2 + 3, K2[0] + 2, K2[0] + 3, K2[1] + 2, K2[1] + 3):
        k(f"v_mov_b32 v{r}, 0")
    for i in range(16):
        k(f"v_mov_b32 v{OA+i}, 0")
    k(f"""
    s_waitcnt vmcnt(20)
    v_cmp_eq_u32 vcc, 0, v4
    s_nop 1
    v_cndmask_b32 v{Q2}, 0, v{Q2}, vcc
    v_mov_b32 v116, 0
    v_dot2c_f32_bf16 v116, v{Q1}, v{Q1}
    v_dot2c_f32_bf16 v116, v{Q1+1}, v{Q1+1}
    v_dot2c_f32_bf16 v116, v{Q1+2}, v{Q1+2}
    v_dot2c_f32_bf16 v116, v{Q1+3}, v{Q1+3}
    v_dot2c_f32_bf16 v116, v{Q2}, v{Q2}
    v_xor_b32 v118, 32, v1
    v_lshlrev_b32 v118, 2, v118
    s_nop 1
    ds_bpermute_b32 v117, v118, v116
    """)
    for sh in (1, 2, 4, 8):
        k(f"v_max_f32_dpp v114, v114, v114 row_ror:{sh} row_mask:0xf bank_mask:0xf")
        k(f"v_max_f32_dpp v115, v115, v115 row_ror:{sh} row_mask:0xf bank_mask:0xf")
        k.nop(1)
    k("""
    v_readlane_b32 s40, v114, 0
    v_readlane_b32 s41, v114, 16
    v_readlane_b32 s42, v114, 32
    v_readlane_b32 s43, v114, 48
    v_readlane_b32 s44, v115, 0
    v_readlane_b32 s45, v115, 16
    v_readlane_b32 s46, v115, 32
    v_readlane_b32 s47, v115, 48
    s_nop 3
    s_max_u32 s40, s40, s41
    s_max_u32 s42, s42, s43
    s_max_u32 s40, s40, s42
    s_max_u32 s44, s44, s45
    s_max_u32 s46, s46, s47
    s_max_u32 s44, s44, s46
    v_mov_b32 v119, s40
    v_add_f32 v119, s44, v119
    s_waitcnt lgkmcnt(0)
    v_add_f32 v116, v116, v117
    v_mul_f32 v116, v116, v119
    s_mov_b32 s40, 0x44c80000
    v_cmp_nge_f32 vcc, s40, v116
    s_nop 3
    s_cmp_lg_u64 vcc, 0
    s_cselect_b32 s48, 1, 0
    s_waitcnt vmcnt(18)
    s_barrier
    s_cmp_eq_u32 s48, 0
    s_cbranch_scc1 L_k3_main
    """)
    k(f"""
    s_waitcnt vmcnt(0)
    s_barrier
    v_mov_b32 v116, 0xff7fffff
    v_mov_b32 v113, v{AK1[0]}
    v_mov_b32 v114, v{AK2[0]}
    s_mov_b32 s40, 0
    L_k3_pre:
    ds_read_b128 v[{K1[0]}:{K1[0]+3}], v113
    ds_read_b64 v[{K2[0]}:{K2[0]+1}], v114
    v_add_u32 v113, {KV_TILE}, v113
    v_add_u32 v114, {KV_TILE}, v114
    s_waitcnt lgkmcnt(0)
    v_mfma_f32_32x32x16_bf16 v[{Sb[0]}:{Sb[0]+15}], v[{K1[0]}:{K1[0]+3}], v[{Q1}:{Q1+3}], 0
    v_mfma_f32_32x32x16_bf16 v[{Sb[0]}:{Sb[0]+15}], v[{K2[0]}:{K2[0]+3}], v[{Q2}:{Q2+3}], v[{Sb[0]}:{Sb[0]+15}]
    s_nop 12
    """)
    for i in range(0, 16, 2):
        k(f"v_max3_f32 v116, v{Sb[0]+i}, v{Sb[0]+i+1}, v116")
    k(f"""
    s_add_u32 s40, s40, 1
    s_cmp_lt_u32 s40, {NT}
    s_cbranch_scc1 L_k3_pre
    ds_bpermute_b32 v117, v118, v116
    s_waitcnt lgkmcnt(0)
    v_max_f32 v116, v116, v117
    v_sub_f32 v116, 0, v116
    v_cvt_pk_bf16_f32 v117, v116, v116
    v_lshlrev_b32 v117, 16, v117
    v_sub_f32 v119, v116, v117
    v_cvt_pk_bf16_f32 v117, v117, v119
    v_cmp_eq_u32 vcc, 0, v4
    s_nop 1
    v_cndmask_b32 v{Q2+1}, 0, v117, vcc
    L_k3_main:
    """)
    def rdK(t):
        g, o = t // GRP, (t % GRP) * KV_TILE
        b = t % 2
        k(f"ds_read_b128 v[{K1[b]}:{K1[b]+3}], v{AK1[g]} offset:{o}")
        k(f"ds_read_b64 v[{K2[b]}:{K2[b]+1}], v{AK2[g]} offset:{o}")
    def rdV(t):
        g, o = t // GRP, (t % GRP) * KV_TILE
        b = t % 2
        k(f"ds_read_b128 v[{V[b][0]}:{V[b][0]+3}], v{AV[g]} offset:{o}")
        k(f"ds_read_b128 v[{V[b][1]}:{V[b][1]+3}], v{AV[g]} offset:{o+608}")
    def qk(t):
        b = t % 2
        k(f"v_mfma_f32_32x32x16_bf16 v[{Sb[b]}:{Sb[b]+15}], v[{K1[b]}:{K1[b]+3}], v[{Q1}:{Q1+3}], 0")
        k(f"v_mfma_f32_32x32x16_bf16 v[{Sb[b]}:{Sb[b]+15}], v[{K2[b]}:{K2[b]+3}], v[{Q2}:{Q2+3}], v[{Sb[b]}:{Sb[b]+15}]")
    rdK(0); rdV(0); rdK(1)
    k("s_waitcnt lgkmcnt(4)")
    qk(0)
    k.nop(10)
    FIRST = 6
    for t in range(NT):
        b = t % 2
        S_ = Sb[b]
        if t + 1 < NT:
            k("s_waitcnt lgkmcnt(0)")
            qk(t + 1)
        else:
            k("s_waitcnt lgkmcnt(0)")
        if t + 2 == FIRST:
            lab = k.label("skipbar")
            k(f"s_cmp_lg_u32 s48, 0\ns_cbranch_scc1 {lab}\ns_waitcnt vmcnt(0)\ns_barrier\n{lab}:")
        if t + 1 < NT: rdV(t + 1)
        if t + 2 < NT: rdK(t + 2)
        for i in range(8):
            k(f"v_exp_f32 v{S_+i}, v{S_+i}")
        k(f"v_exp_f32 v{S_+8}, v{S_+8}")
        for i in range(4):
            k(f"v_cvt_pk_bf16_f32 v{P+i}, v{S_+2*i}, v{S_+2*i+1}")
        for i in range(9, 11):
            k(f"v_exp_f32 v{S_+i}, v{S_+i}")
        k(f"v_mfma_f32_32x32x16_bf16 v[{OA}:{OA+15}], v[{V[b][0]}:{V[b][0]+3}], v[{P}:{P+3}], v[{OA}:{OA+15}]")
        for i in range(11, 16):
            k(f"v_exp_f32 v{S_+i}, v{S_+i}")
        k("s_nop 0")
        for i in range(4, 8):
            k(f"v_cvt_pk_bf16_f32 v{P+i}, v{S_+2*i}, v{S_+2*i+1}")
        k.nop(2)
        k(f"v_mfma_f32_32x32x16_bf16 v[{OA}:{OA+15}], v[{V[b][1]}:{V[b][1]+3}], v[{P+4}:{P+7}], v[{OA}:{OA+15}]")
    k.nop(12)
    k(f"""
    v_lshlrev_b32 v118, 2, v3
    ds_bpermute_b32 v117, v118, v{OA+10}
    v_mul_u32_u24 v5, 36, v3
    v_lshl_add_u32 v5, v4, 3, v5
    s_waitcnt lgkmcnt(0)
    v_rcp_f32 v117, v117
    s_nop 0
    """)
    for i in range(10):
        k(f"v_mul_f32 v{OA+i}, v{OA+i}, v117")
    for i in range(5):
        k(f"v_cvt_pk_bf16_f32 v{P+i}, v{OA+2*i}, v{OA+2*i+1}")
    k(f"""
    buffer_store_dwordx2 v[{P}:{P+1}], v5, s[36:39], s22 offen
    buffer_store_dwordx2 v[{P+2}:{P+3}], v5, s[36:39], s22 offen offset:16
    v_cmp_eq_u32 vcc, 0, v4
    s_and_saveexec_b64 s[44:45], vcc
    buffer_store_dword v{P+4}, v5, s[36:39], s22 offen offset:32
    L_k3_end:
    s_endpgm
    """)
    return k
```

```python
from fw import *
from layout import *
from k2 import small_gemm, gemm_addr

def gen_k4():
    k = Kern("wo_kernel", 256, 576, 36864, 168)
    k("""
    s_load_dwordx2 s[4:5], s[0:1], 0
    s_load_dwordx2 s[20:21], s[0:1], 104
    v_and_b32 v1, 63, v0
    v_lshrrev_b32 v2, 6, v0
    s_nop 0
    v_readfirstlane_b32 s3, v2
    s_cmp_ge_u32 s2, 256
    s_cbranch_scc1 L_k4_end
    s_movk_i32 s22, 911
    v_mul_lo_u32 v2, v0, s22
    v_lshrrev_b32 v2, 16, v2
    v_mul_u32_u24 v3, 72, v2
    v_sub_u32 v3, v0, v3
    s_and_b32 s22, s2, 7
    s_lshl_b32 s22, s22, 3
    s_lshr_b32 s23, s2, 3
    s_and_b32 s23, s23, 7
    s_add_u32 s22, s22, s23
    s_lshr_b32 s49, s2, 6
    s_mul_i32 s23, s49, 9
    s_add_u32 s23, s23, s3
    s_waitcnt lgkmcnt(0)
    """)
    k.srd(24, 4, S * 1152)
    k.srd(28, 20, O_SZ, O)
    k.srd(32, 20, MOD_SZ, MOD)
    k.srd(36, 20, WO_SZ, WOP)
    k("""
    v_mul_u32_u24 v4, 1152, v2
    v_lshl_add_u32 v4, v3, 4, v4
    s_mul_i32 s40, s22, 36864
    s_mov_b32 s41, s40
    """)
    for p in range(4):
        k(f"buffer_load_dwordx4 v[{80+4*p}:{83+4*p}], v4, s[28:31], s40 offen")
        if p < 3: k("s_add_u32 s40, s40, 9216")
    k("""
    v_and_b32 v5, 15, v1
    v_lshrrev_b32 v6, 4, v1
    v_mul_u32_u24 v140, 1152, v5
    v_lshl_add_u32 v140, v6, 3, v140
    s_lshl_b32 s42, s23, 5
    s_add_u32 s41, s41, s42
    s_add_u32 s42, s41, 18432
    v_lshlrev_b32 v141, 4, v6
    s_lshl_b32 s43, s23, 6
    s_add_u32 s43, s43, 4608
    s_add_u32 s44, s43, 4608
    buffer_load_dwordx2 v[144:145], v140, s[24:27], s41 offen
    buffer_load_dwordx2 v[146:147], v140, s[24:27], s42 offen
    buffer_load_dwordx4 v[148:151], v141, s[32:35], s43 offen
    buffer_load_dwordx4 v[152:155], v141, s[32:35], s44 offen
    v_lshlrev_b32 v7, 4, v1
    s_mul_i32 s40, s23, 18432
    """)
    for ks in range(18):
        k(f"buffer_load_dwordx4 v[{8+4*ks}:{11+4*ks}], v7, s[36:39], s40 offen offset:{(ks&3)*1024}")
        if ks & 3 == 3: k("s_add_u32 s40, s40, 4096")
    k("""
    v_xor_b32 v5, v3, v2
    v_mul_u32_u24 v4, 1152, v2
    v_lshl_add_u32 v4, v5, 4, v4
    """)
    for p in range(4):
        k(f"s_waitcnt vmcnt({18+4+3-p})")
        k(f"ds_write_b128 v4, v[{80+4*p}:{83+4*p}] offset:{9216*p}")
    gemm_addr(k)
    k("s_waitcnt lgkmcnt(0)\ns_barrier")
    small_gemm(k, 8, 80, 12, 128, 5, 6, False)
    k.srd(24, 20, X1_SZ, X1)
    k.srd(28, 20, X1P_SZ, X1P)
    k.srd(32, 20, ST2_SZ, ST2)
    for tt in range(2):
        xs = 144 + 2 * tt
        a = 128 + 4 * tt
        k(f"""
        v_lshlrev_b32 v80, 16, v{xs}
        v_and_b32 v81, 0xffff0000, v{xs}
        v_lshlrev_b32 v82, 16, v{xs+1}
        v_and_b32 v83, 0xffff0000, v{xs+1}
        """)
        for i in range(4):
            k(f"v_fmac_f32 v{80+i}, v{148+i}, v{a+i}")
        o = 84 + 8 * tt
        k(f"""
        v_cvt_pk_bf16_f32 v{o}, v80, v81
        v_cvt_pk_bf16_f32 v{o+1}, v82, v83
        v_lshlrev_b32 v80, 16, v{o}
        v_and_b32 v81, 0xffff0000, v{o}
        v_lshlrev_b32 v82, 16, v{o+1}
        v_and_b32 v83, 0xffff0000, v{o+1}
        v_add_f32 v{o+4}, v80, v81
        v_add_f32 v{o+5}, v82, v83
        v_add_f32 v{o+4}, v{o+4}, v{o+5}
        v_mul_f32 v{o+5}, v80, v80
        v_fmac_f32 v{o+5}, v81, v81
        v_fmac_f32 v{o+5}, v82, v82
        v_fmac_f32 v{o+5}, v83, v83
        """)
        for i in range(4):
            k(f"v_mul_f32 v{80+i}, v{80+i}, v{152+i}")
        k(f"""
        v_cvt_pk_bf16_f32 v{o+2}, v80, v81
        v_cvt_pk_bf16_f32 v{o+3}, v82, v83
        buffer_store_dwordx2 v[{o}:{o+1}], v140, s[24:27], s{41+tt} offen
        buffer_store_dwordx2 v[{o+2}:{o+3}], v140, s[28:31], s{41+tt} offen
        """)
    k("""
    s_barrier
    s_lshl_b32 s40, s3, 2
    v_add_u32 v7, s40, v4
    v_lshlrev_b32 v7, 8, v7
    v_lshl_add_u32 v7, v3, 3, v7
    ds_write_b64 v7, v[88:89]
    ds_write_b64 v7, v[96:97] offset:128
    s_waitcnt lgkmcnt(0)
    s_barrier
    s_cmp_lg_u32 s3, 0
    s_cbranch_scc1 L_k4_end
    v_lshlrev_b32 v7, 2, v1
    """)
    for p in range(36):
        k(f"ds_read_b32 v{8+p}, v7 offset:{256*p}")
        if p % 12 == 11: k("s_waitcnt lgkmcnt(0)")
    for a in range(4):
        for i in range(a + 4, 36, 4):
            k(f"v_add_f32 v{8+a}, v{8+a}, v{8+i}")
    k("""
    v_add_f32 v8, v8, v9
    v_add_f32 v10, v10, v11
    v_add_f32 v8, v8, v10
    v_lshrrev_b32 v5, 1, v1
    v_and_b32 v6, 1, v1
    v_lshlrev_b32 v5, 5, v5
    v_lshl_add_u32 v5, v6, 2, v5
    s_lshl_b32 s40, s22, 10
    s_lshl_b32 s41, s49, 3
    s_add_u32 s40, s40, s41
    buffer_store_dword v8, v5, s[32:35], s40 offen
    L_k4_end:
    s_endpgm
    """)
    return k

def gen_k7():
    k = Kern("fin_kernel", 576, 256, 0, 64)
    k("""
    s_load_dwordx2 s[4:5], s[0:1], 88
    s_load_dwordx2 s[20:21], s[0:1], 104
    s_cmp_ge_u32 s2, 576
    s_cbranch_scc1 L_k7_end
    s_lshl_b32 s22, s2, 8
    v_add_u32 v1, s22, v0
    s_mov_b32 s23, 0x38e38e4
    v_mul_hi_u32 v2, v1, s23
    v_mul_u32_u24 v3, 72, v2
    v_sub_u32 v3, v1, v3
    v_lshlrev_b32 v4, 4, v1
    v_lshlrev_b32 v5, 5, v1
    v_lshlrev_b32 v6, 5, v3
    s_waitcnt lgkmcnt(0)
    """)
    k.srd(24, 4, S * 1152)
    k.srd(28, 20, X1_SZ, X1)
    k.srd(32, 20, 2304, MOD + 5 * 2304)
    k.srd(36, 20, PART_SZ, PART)
    k("s_mov_b32 s40, 0")
    for sp in range(4):
        k(f"buffer_load_dwordx4 v[{8+8*sp}:{11+8*sp}], v5, s[36:39], s40 offen")
        k(f"buffer_load_dwordx4 v[{12+8*sp}:{15+8*sp}], v5, s[36:39], s40 offen offset:16")
        if sp < 3: k(f"s_add_u32 s40, s40, {S*D*4}")
    k("""
    buffer_load_dwordx4 v[40:43], v4, s[28:31], 0 offen
    buffer_load_dwordx4 v[44:47], v6, s[32:35], 0 offen
    buffer_load_dwordx4 v[48:51], v6, s[32:35], 0 offen offset:16
    s_waitcnt vmcnt(7)
    """)
    k("s_waitcnt vmcnt(5)")
    for i in range(8): k(f"v_add_f32 v{8+i}, v{8+i}, v{16+i}")
    k("s_waitcnt vmcnt(3)")
    for i in range(8): k(f"v_add_f32 v{24+i}, v{24+i}, v{32+i}")
    for i in range(8): k(f"v_add_f32 v{8+i}, v{8+i}, v{24+i}")
    k("s_waitcnt vmcnt(0)")
    for d in range(4):
        k(f"v_lshlrev_b32 v52, 16, v{40+d}")
        k(f"v_and_b32 v53, 0xffff0000, v{40+d}")
        k(f"v_fmac_f32 v52, v{44+2*d}, v{8+2*d}")
        k(f"v_fmac_f32 v53, v{45+2*d}, v{9+2*d}")
        k(f"v_cvt_pk_bf16_f32 v{56+d}, v52, v53")
    k("""
    buffer_store_dwordx4 v[56:59], v4, s[24:27], 0 offen
    L_k7_end:
    s_endpgm
    """)
    return k
```

```python
from fw import *
from layout import *
from k1 import bf16r, LOG2E

def gen_k5():
    NW = 12
    STG = 36864
    NST = 18
    k = Kern("ffn1_kernel", 256, NW * 64, 4 * STG, 168)
    DM = [0, 1, 2]
    AT = [3, 4]; AW = [5, 6]
    C1 = 8; C2 = 12
    W = 16; T = [40, 56]; ACC = 72
    def acc(wf, tf): return ACC + 4 * (wf * 4 + tf)
    k("""
    s_load_dwordx4 s[8:11], s[0:1], 48
    s_load_dwordx2 s[20:21], s[0:1], 104
    v_and_b32 v1, 63, v0
    v_lshrrev_b32 v2, 6, v0
    s_nop 0
    v_readfirstlane_b32 s3, v2
    s_cmp_ge_u32 s2, 256
    s_cbranch_scc1 L_k5_end
    s_and_b32 s22, s2, 7
    s_lshl_b32 s22, s22, 2
    s_lshr_b32 s23, s2, 3
    s_and_b32 s24, s23, 3
    s_add_u32 s22, s22, s24
    s_lshr_b32 s23, s23, 2
    s_and_b32 s24, s3, 3
    s_lshr_b32 s25, s3, 2
    s_lshl_b32 s26, s23, 8
    s_mul_i32 s27, s22, 144
    v_and_b32 v16, 15, v1
    v_lshrrev_b32 v17, 4, v1
    s_waitcnt lgkmcnt(0)
    """)
    k.srd(28, 20, ST2_SZ, ST2)
    k.srd(32, 20, CS_SZ, CS)
    k("""
    v_mov_b32 v160, v16
    v_mov_b32 v161, v17
    v_lshlrev_b32 v162, 5, v160
    s_lshl_b32 s40, s24, 6
    s_add_u32 s40, s40, s26
    s_lshl_b32 s41, s40, 5
    v_lshlrev_b32 v163, 4, v161
    s_mul_i32 s42, s25, 48
    s_add_u32 s42, s42, s27
    s_lshl_b32 s43, s42, 2
    """)
    for tf in range(4):
        k(f"buffer_load_dwordx4 v[{T[0]+8*tf}:{T[0]+8*tf+3}], v162, s[28:31], s41 offen offset:{512*tf}")
        k(f"buffer_load_dwordx4 v[{T[0]+8*tf+4}:{T[0]+8*tf+7}], v162, s[28:31], s41 offen offset:{512*tf+16}")
    for mat in range(2):
        for vec in range(2):
            for ft in range(3):
                wf = 2 * ft + mat
                dst = (W + 4 * wf) if vec == 0 else acc(wf, 0)
                k(f"buffer_load_dwordx4 v[{dst}:{dst+3}], v163, s[32:35], s43 offen offset:{64*ft}")
            k(f"s_add_u32 s43, s43, {F*4}")
    for q in range(3):
        sr = 44 + 4 * q
        la, lb = k.label("dmaw"), k.label("dmad")
        dst = (166, 159, 2)[q]
        k(f"""
        s_mul_i32 s66, s3, 3
        s_add_u32 s66, s66, {q}
        s_lshl_b32 s{62+q}, s66, 10
        s_mov_b32 s{sr+3}, 0x20000
        s_cmp_ge_u32 s66, 16
        s_cbranch_scc1 {la}
        s_add_u32 s{sr}, s20, {X1P}
        s_addc_u32 s{sr+1}, s21, 0
        s_mov_b32 s{sr+2}, {X1P_SZ}
        s_mul_i32 s{56+q}, s26, 1152
        s_mov_b32 s{59+q}, 64
        s_lshl_b32 s67, s66, 4
        v_lshrrev_b32 v164, 2, v1
        v_add_u32 v164, s67, v164
        v_lshrrev_b32 v165, 4, v1
        v_sub_u32 v165, 4, v165
        v_xor_b32 v165, v165, v1
        v_and_b32 v165, 3, v165
        v_mul_u32_u24 v164, 1152, v164
        v_lshl_add_u32 v{dst}, v165, 4, v164
        s_branch {lb}
        {la}:
        s_cmp_ge_u32 s66, 26
        s_cselect_b32 s{sr}, s10, s8
        s_cselect_b32 s{sr+1}, s11, s9
        s_cselect_b32 s67, 26, 16
        s_mov_b32 s{sr+2}, 5308416
        s_lshl_b32 s{56+q}, s27, 1
        s_mov_b32 s{59+q}, {32*9216}
        s_sub_u32 s67, s66, s67
        s_lshl_b32 s67, s67, 6
        v_add_u32 v164, s67, v1
        v_mul_u32_u24 v165, 863, v164
        v_lshrrev_b32 v165, 17, v165
        v_mul_u32_u24 v167, 152, v165
        v_sub_u32 v164, v164, v167
        v_min_u32 v164, 143, v164
        v_min_u32 v165, 3, v165
        v_mul_u32_u24 v167, 3641, v164
        v_lshrrev_b32 v167, 16, v167
        v_lshl_add_u32 v165, v165, 3, v167
        v_mul_u32_u24 v167, 18, v167
        v_sub_u32 v164, v164, v167
        v_mul_u32_u24 v165, 9216, v165
        v_lshl_add_u32 v{dst}, v164, 4, v165
        {lb}:
        """)
    k(f"""
    v_lshrrev_b32 v164, 2, v160
    v_sub_u32 v164, 4, v164
    v_xor_b32 v164, v164, v161
    v_and_b32 v164, 3, v164
    s_lshl_b32 s66, s24, 12
    v_lshlrev_b32 v{AT[0]}, 6, v160
    v_lshl_add_u32 v{AT[0]}, v164, 4, v{AT[0]}
    v_add_u32 v{AT[0]}, s66, v{AT[0]}
    v_add_u32 v{AT[1]}, {2*STG}, v{AT[0]}
    v_bfe_u32 v164, v1, 2, 2
    v_lshl_add_u32 v164, v161, 3, v164
    v_mul_u32_u24 v164, 288, v164
    v_lshl_add_u32 v164, v161, 7, v164
    v_and_b32 v165, 3, v1
    v_lshl_add_u32 v164, v165, 3, v164
    s_mul_i32 s66, s25, 96
    v_add_u32 v{AW[0]}, s66, v164
    v_add_u32 v{AW[1]}, {2*STG}, v{AW[0]}
    v_and_b32 v164, 1, v161
    v_lshl_add_u32 v164, v164, 4, v160
    s_movk_i32 s66, 9216
    v_mul_lo_u32 v164, v164, s66
    v_lshrrev_b32 v165, 1, v161
    v_lshl_add_u32 v7, v165, 4, v164
    v_mov_b32 v0, v166
    v_mov_b32 v1, v159
    """)
    def dma(st):
        buf = st % 4
        for q in range(3):
            k(f"s_add_u32 m0, s{62+q}, {buf*STG}")
            k("s_nop 0")
            k(f"buffer_load_dwordx4 v{DM[q]}, s[{44+4*q}:{47+4*q}], s{56+q} offen lds")
            k(f"s_add_u32 s{56+q}, s{56+q}, s{59+q}")
    dma(0); dma(1); dma(2)
    k("s_waitcnt vmcnt(21)")
    MU, SD = 160, 164
    for tf in range(4):
        b = T[0] + 8 * tf
        k(f"""
        v_add_f32 v{b}, v{b}, v{b+2}
        v_add_f32 v{b+4}, v{b+4}, v{b+6}
        v_add_f32 v{b+1}, v{b+1}, v{b+3}
        v_add_f32 v{b+5}, v{b+5}, v{b+7}
        v_add_f32 v{b}, v{b}, v{b+4}
        v_add_f32 v{b+1}, v{b+1}, v{b+5}
        v_mul_f32 v{b}, {fhex(1/576)}, v{b}
        v_mul_f32 v{b+1}, {fhex(1/576)}, v{b+1}
        v_fma_f32 v{b+1}, -v{b}, v{b}, v{b+1}
        v_max_f32 v{b+1}, 0, v{b+1}
        """)
        bf16r(k, MU + tf, b)
        bf16r(k, b + 1, b + 1)
        k(f"v_add_f32 v{b+1}, {fhex(1e-5)}, v{b+1}")
        bf16r(k, b + 1, b + 1)
        k(f"v_sqrt_f32 v{b+1}, v{b+1}\ns_nop 0")
        bf16r(k, SD + tf, b + 1)
        k(f"v_rcp_f32 v{b+2}, v{SD+tf}\ns_nop 0")
        k(f"v_mul_f32 v{C1+tf}, {fhex(-LOG2E)}, v{b+2}")
        k(f"v_mul_f32 v{C2+tf}, v{b+2}, v{b+2}")
    for i in range(4):
        k(f"v_mov_b32 v{T[1]+i}, v{MU+i}")
        k(f"v_mov_b32 v{T[1]+4+i}, v{SD+i}")
    MU, SD = T[1], T[1] + 4
    k("s_waitcnt vmcnt(9)")
    for wf in range(6):
        for tf in (3, 2, 1, 0):
            for r in range(4):
                d = acc(wf, tf) + r
                k(f"v_mul_f32 v{d}, v{acc(wf,0)+r}, v{SD+tf}")
                k(f"v_fma_f32 v{d}, -v{MU+tf}, v{W+4*wf+r}, v{d}")
    def rdT(st):
        buf = st % 4
        a = AT[buf >> 1]; o = (buf & 1) * STG
        for tf in range(4):
            b = T[st % 2] + 4 * tf
            k(f"ds_read_b128 v[{b}:{b+3}], v{a} offset:{o + 1024*tf}")
    def rdW(st, wf):
        buf = st % 4
        a = AW[buf >> 1]; o = (buf & 1) * STG
        ft, mat = wf // 2, wf % 2
        for j in range(2):
            b = W + 4 * wf + 2 * j
            k(f"ds_read_b64_tr_b16 v[{b}:{b+1}], v{a} offset:{o + 16384 + mat*10240 + j*1152 + ft*32}")
    k("s_waitcnt vmcnt(6)\ns_barrier")
    rdT(0)
    for wf in range(6): rdW(0, wf)
    for st in range(NST):
        if st + 1 < NST:
            outstanding = 3 if st + 2 < NST else 0
            k(f"s_waitcnt vmcnt({outstanding})")
            k("s_barrier")
        if st + 3 < NST: dma(st + 3)
        nxt = st + 1 < NST
        for wf in range(6):
            if nxt:
                n = 10 if wf == 0 else 14
            else:
                n = 2 * (5 - wf)
            k(f"s_waitcnt lgkmcnt({n})")
            for tf in range(4):
                a = acc(wf, tf)
                t = T[st % 2] + 4 * tf
                k(f"v_mfma_f32_16x16x32_bf16 v[{a}:{a+3}], v[{W+4*wf}:{W+4*wf+3}], v[{t}:{t+3}], v[{a}:{a+3}]")
                if nxt and wf == 0 and tf == 0: rdT(st + 1)
            if nxt: rdW(st + 1, wf)
    k.nop(8)
    k.srd(28, 20, ACT_SZ, ACT)
    k(f"""
    s_mul_i32 s41, s40, 9216
    s_lshl_b32 s42, s42, 1
    s_add_u32 s41, s41, s42
    s_add_u32 s42, s41, {32*9216}
    """)
    E = 16
    for ft in range(3):
        for pr in range(2):
            o = E + 32 + 4 * ((ft * 2 + pr) % 4)
            for half in range(2):
                tf = 2 * pr + half
                a, b = acc(2 * ft, tf), acc(2 * ft + 1, tf)
                e = E + 8 * half
                for r in range(4): k(f"v_mul_f32 v{e+r}, v{C1+tf}, v{a+r}")
                for r in range(4): k(f"v_exp_f32 v{e+r}, v{e+r}")
                for r in range(4): k(f"v_mul_f32 v{e+4+r}, v{a+r}, v{b+r}")
                for r in range(4): k(f"v_add_f32 v{e+r}, 1.0, v{e+r}")
                for r in range(4): k(f"v_rcp_f32 v{e+r}, v{e+r}")
                for r in range(4): k(f"v_mul_f32 v{e+4+r}, v{C2+tf}, v{e+4+r}")
                for r in range(4): k(f"v_mul_f32 v{e+4+r}, v{e+4+r}, v{e+r}")
                k(f"v_cvt_pk_bf16_f32 v{o+2*half}, v{e+4}, v{e+5}")
                k(f"v_cvt_pk_bf16_f32 v{o+2*half+1}, v{e+6}, v{e+7}")
            k.nop(2)
            k(f"v_permlane16_swap_b32 v{o}, v{o+2}")
            k(f"v_permlane16_swap_b32 v{o+1}, v{o+3}")
            k(f"buffer_store_dwordx4 v[{o}:{o+3}], v7, s[28:31], s{41+pr} offen offset:{32*ft}")
    k("L_k5_end:\ns_endpgm")
    return k
```

```python
from fw import *
from layout import *

def gen_k6():
    NW = 8
    STG = 36864
    NST = 18
    k = Kern("ffn2_kernel", 256, NW * 64, 4 * STG, 160)
    DM = [0, 1, 2, 3, 4]
    AT = [5, 6]; AW = [7, 8]
    W = 12; T = [48, 56]; ACC = 64
    def acc(wf, tf): return ACC + 4 * (wf * 2 + tf)
    TMP = 140
    k(f"""
    s_load_dwordx2 s[8:9], s[0:1], 64
    s_load_dwordx2 s[20:21], s[0:1], 104
    v_and_b32 v{TMP}, 63, v0
    v_lshrrev_b32 v2, 6, v0
    s_nop 0
    v_readfirstlane_b32 s3, v2
    s_cmp_ge_u32 s2, 256
    s_cbranch_scc1 L_k6_end
    s_and_b32 s22, s2, 7
    s_lshr_b32 s23, s2, 3
    s_lshr_b32 s24, s22, 1
    s_and_b32 s22, s22, 1
    s_lshl_b32 s22, s22, 3
    s_and_b32 s25, s23, 7
    s_add_u32 s22, s22, s25
    s_lshr_b32 s23, s23, 3
    s_and_b32 s25, s3, 3
    s_lshr_b32 s26, s3, 2
    v_and_b32 v{TMP+1}, 15, v{TMP}
    v_lshrrev_b32 v{TMP+2}, 4, v{TMP}
    s_waitcnt lgkmcnt(0)
    """)
    L, Tt, G = TMP, TMP + 1, TMP + 2
    X, Y, Z = TMP + 3, TMP + 4, TMP + 5
    for q in range(5):
        sr = 40 + 4 * q
        la, lb = k.label("dmaw"), k.label("dmad")
        if q < 4:
            k(f"s_lshl_b32 s76, s3, 2\ns_add_u32 s76, s76, {q}")
        else:
            k("s_min_u32 s76, s3, 2\ns_add_u32 s76, s76, 32")
        k(f"""
        s_lshl_b32 s{70+q}, s76, 10
        s_mov_b32 s{sr+3}, 0x20000
        s_cmp_ge_u32 s76, 16
        s_cbranch_scc1 {la}
        s_add_u32 s{sr}, s20, {ACT}
        s_addc_u32 s{sr+1}, s21, 0
        s_mov_b32 s{sr+2}, {ACT_SZ}
        s_mul_i32 s{60+q}, s22, {128*9216}
        s_mul_i32 s77, s24, 2304
        s_add_u32 s{60+q}, s{60+q}, s77
        s_mov_b32 s{65+q}, 128
        s_lshl_b32 s77, s76, 3
        v_lshrrev_b32 v{X}, 3, v{L}
        v_xor_b32 v{Y}, v{X}, v{L}
        v_and_b32 v{Y}, 7, v{Y}
        v_add_u32 v{X}, s77, v{X}
        s_movk_i32 s77, 9216
        v_mul_lo_u32 v{X}, v{X}, s77
        v_lshl_add_u32 v{DM[q]}, v{Y}, 4, v{X}
        s_branch {lb}
        {la}:
        s_mov_b32 s{sr}, s8
        s_mov_b32 s{sr+1}, s9
        s_mov_b32 s{sr+2}, 5308416
        s_mul_i32 s{60+q}, s24, {1152*1152}
        s_mul_i32 s77, s23, 288
        s_add_u32 s{60+q}, s{60+q}, s77
        s_mov_b32 s{65+q}, {64*1152}
        s_sub_u32 s77, s76, 16
        s_lshl_b32 s77, s77, 6
        v_add_u32 v{X}, s77, v{L}
        v_mul_u32_u24 v{Y}, 863, v{X}
        v_lshrrev_b32 v{Y}, 17, v{Y}
        v_mul_u32_u24 v{Z}, 152, v{Y}
        v_sub_u32 v{X}, v{X}, v{Z}
        v_min_u32 v{X}, 143, v{X}
        v_min_u32 v{Y}, 7, v{Y}
        v_mul_u32_u24 v{Z}, 3641, v{X}
        v_lshrrev_b32 v{Z}, 16, v{Z}
        v_lshl_add_u32 v{Y}, v{Y}, 3, v{Z}
        v_mul_u32_u24 v{Z}, 18, v{Z}
        v_sub_u32 v{X}, v{X}, v{Z}
        v_mul_u32_u24 v{Y}, 1152, v{Y}
        v_lshl_add_u32 v{DM[q]}, v{X}, 4, v{Y}
        {lb}:
        """)
    def dma(st):
        buf = st % 4
        for q in range(5):
            lab = None
            if q == 4:
                lab = k.label("nodma")
                k(f"s_cmp_ge_u32 s3, 3\ns_cbranch_scc1 {lab}")
            k(f"s_add_u32 m0, s{70+q}, {buf*STG}")
            k("s_nop 0")
            k(f"buffer_load_dwordx4 v{DM[q]}, s[{40+4*q}:{43+4*q}], s{60+q} offen lds")
            k(f"s_add_u32 s{60+q}, s{60+q}, s{65+q}")
            if lab: k(f"{lab}:")
    dma(0); dma(1); dma(2)
    k(f"""
    s_lshl_b32 s76, s26, 2
    v_add_u32 v{X}, s76, v{G}
    v_xor_b32 v{X}, v{X}, v{Tt}
    v_and_b32 v{X}, 7, v{X}
    v_lshlrev_b32 v{AT[0]}, 7, v{Tt}
    v_lshl_add_u32 v{AT[0]}, v{X}, 4, v{AT[0]}
    s_lshl_b32 s76, s25, 12
    v_add_u32 v{AT[0]}, s76, v{AT[0]}
    v_add_u32 v{AT[1]}, {2*STG}, v{AT[0]}
    v_bfe_u32 v{X}, v{L}, 2, 2
    v_lshl_add_u32 v{X}, v{G}, 3, v{X}
    v_mul_u32_u24 v{X}, 288, v{X}
    v_lshl_add_u32 v{X}, v{G}, 7, v{X}
    v_and_b32 v{Y}, 3, v{L}
    v_lshl_add_u32 v{X}, v{Y}, 3, v{X}
    s_mul_i32 s76, s26, {32*288+512}
    v_add_u32 v{AW[0]}, s76, v{X}
    v_add_u32 v{AW[1]}, {2*STG}, v{AW[0]}
    """)
    def rdT(st):
        buf = st % 4
        a = AT[buf >> 1]; o = (buf & 1) * STG
        for tf in range(2):
            b = T[st % 2] + 4 * tf
            k(f"ds_read_b128 v[{b}:{b+3}], v{a} offset:{o + 2048*tf}")
    def rdW(st, wf):
        buf = st % 4
        a = AW[buf >> 1]; o = (buf & 1) * STG
        for j in range(2):
            b = W + 4 * wf + 2 * j
            k(f"ds_read_b64_tr_b16 v[{b}:{b+1}], v{a} offset:{o + 16384 + j*1152 + wf*32}")
    k("s_waitcnt vmcnt(8)\ns_barrier")
    rdT(0)
    for wf in range(9): rdW(0, wf)
    for st in range(NST):
        if st + 1 < NST:
            outstanding = 4 if st + 2 < NST else 0
            k(f"s_waitcnt vmcnt({outstanding})")
            k("s_barrier")
        if st + 3 < NST: dma(st + 3)
        nxt = st + 1 < NST
        for wf in range(9):
            n = (16 if wf == 0 else 18) if nxt else 2 * (8 - wf)
            k(f"s_waitcnt lgkmcnt({min(n,15)})")
            for tf in range(2):
                a = acc(wf, tf)
                t = T[st % 2] + 4 * tf
                c = "0" if st == 0 else f"v[{a}:{a+3}]"
                k(f"v_mfma_f32_16x16x32_bf16 v[{a}:{a+3}], v[{W+4*wf}:{W+4*wf+3}], v[{t}:{t+3}], {c}")
                if nxt and wf == 0 and tf == 0: rdT(st + 1)
            if nxt: rdW(st + 1, wf)
    k.nop(8)
    k(f"""
    s_barrier
    s_mul_i32 s76, s25, {18*1024}
    v_lshlrev_b32 v{X}, 4, v{L}
    v_add_u32 v{X}, s76, v{X}
    v_mul_u32_u24 v{Y}, 2304, v{Tt}
    v_lshl_add_u32 v{Y}, v{G}, 4, v{Y}
    s_mul_i32 s40, s24, {S*D*4}
    s_mul_i32 s41, s22, {128*2304}
    s_add_u32 s40, s40, s41
    s_mul_i32 s41, s25, {32*2304}
    s_add_u32 s40, s40, s41
    s_mul_i32 s41, s23, 576
    s_add_u32 s40, s40, s41
    s_add_u32 s41, s40, {16*2304}
    """)
    k.srd(28, 20, PART_SZ, PART)
    k("s_cmp_eq_u32 s26, 1\ns_cbranch_scc1 L_k6_h1")
    for kh in range(2):
        keep = range(0, 5) if kh == 0 else range(5, 9)
        give = range(5, 9) if kh == 0 else range(0, 5)
        if kh == 1: k("L_k6_h1:")
        for wf in give:
            for tf in range(2):
                a = acc(wf, tf)
                k(f"ds_write_b128 v{X}, v[{a}:{a+3}] offset:{(wf*2+tf)*1024}")
        k("s_waitcnt lgkmcnt(0)\ns_barrier")
        n = 0
        for wf in keep:
            for tf in range(2):
                k(f"ds_read_b128 v[{W+4*n}:{W+4*n+3}], v{X} offset:{(wf*2+tf)*1024}")
                n += 1
        tot = n
        n = 0
        for wf in keep:
            for tf in range(2):
                a = acc(wf, tf)
                k(f"s_waitcnt lgkmcnt({tot-n-1})")
                for r in range(4):
                    k(f"v_add_f32 v{a+r}, v{a+r}, v{W+4*n+r}")
                k(f"buffer_store_dwordx4 v[{a}:{a+3}], v{Y}, s[28:31], s{40+tf} offen offset:{wf*64}")
                n += 1
        if kh == 0: k("s_branch L_k6_end")
    k("L_k6_end:\ns_endpgm")
    return k
```

```python
S, D, F, H, DH = 2048, 576, 4608, 32, 18
def al(x, a=4096): return (x + a - 1) // a * a
import os
off = int(os.environ.get('WS_BASE_MB', '0')) << 20
def region(n):
    global off
    o = off
    off = al(off + n)
    return o
MOD_SZ = 3456 * 4;            MOD = region(MOD_SZ)
MODH_SZ = 576 * 4;            MODH = region(MODH_SZ)
ST1_SZ = S * 8;               ST1 = region(ST1_SZ)
WQKV_SZ = 40 * 18 * 1024;     WQKV = region(WQKV_SZ)
WO_SZ = 36 * 18 * 1024;       WOP = region(WO_SZ)
Q_SZ = S * D * 2;             Q = region(Q_SZ)
KV_TILE = 2496
KV_SZ = 163840;               KV = region(KV_SZ)
KMAX_SZ = 32 * 4 * 4;         KMAX = region(KMAX_SZ)
CS_SZ = 4 * F * 4;            CS = region(CS_SZ)
O_SZ = S * D * 2;             O = region(O_SZ)
X1_SZ = S * D * 2;            X1 = region(X1_SZ)
X1P_SZ = S * D * 2;           X1P = region(X1P_SZ)
ST2_SZ = S * 4 * 8;           ST2 = region(ST2_SZ)
ACT_SZ = S * F * 2;           ACT = region(ACT_SZ)
PART_SZ = 4 * S * D * 4;      PART = region(PART_SZ)
FLG_SZ = 64 * 256;            FLG = region(FLG_SZ)
GO_SZ = 256 * 128;            GO = region(GO_SZ)
WS_USED = off
```

```python
import sys
sys.path.insert(0, "gen")
from fw import *
from layout import *
from k1 import gen_k1
from k2 import gen_k2
from k3 import gen_k3
from k4 import gen_k4, gen_k7
from k5 import gen_k5
from k6 import gen_k6

HEADER = open("adaLN_cond__grouped_kv_mqa__swiglu_ffn__prompt.s.ref").read().split("; Override launch")[0]

def build(path):
    ks = [gen_k1(), gen_k2(), gen_k3(), gen_k4(), gen_k5(), gen_k6(), gen_k7()]
    nerr = 0
    for k in ks:
        errs = check_hazards(k.lines, k.name)
        for e in errs: print("HAZARD", e)
        nerr += len(errs)
    out = [HEADER.rstrip()]
    for k in ks:
        out.append(f"; @launch kernel={k.name} grid=({k.grid},1,1) block=({k.block},1,1) lds={k.lds}")
    out.append('.amdgcn_target "amdgcn-amd-amdhsa--gfx950"\n.text')
    for k in ks: out.append(k.text())
    out.append('.section .rodata,"a"')
    for k in ks: out.append(k.desc())
    open(path, "w").write("\n".join(out) + "\n")
    print("written", path, "hazards:", nerr)

if __name__ == "__main__":
    build(sys.argv[1] if len(sys.argv) > 1 else "adaLN_cond__grouped_kv_mqa__swiglu_ffn__prompt.s")
```

```python
import re

class Kern:
    def __init__(self, name, grid, block, lds, nvgpr, nsgpr=102):
        self.name, self.grid, self.block, self.lds = name, grid, block, lds
        self.nvgpr, self.nsgpr = nvgpr, nsgpr
        self.lines = []
        self.nlabel = 0
    def __call__(self, s):
        for ln in s.strip("\n").split("\n"):
            ln = ln.strip()
            if ln:
                self.lines.append(ln)
    def label(self, base):
        self.nlabel += 1
        return f"L_{self.name}_{base}_{self.nlabel}"
    def nop(self, n):
        while n > 0:
            k = min(n, 16)
            self(f"s_nop {k-1}")
            n -= k
    def srd(self, d, base, size, off=0):
        if off:
            self(f"s_add_u32 s{d}, s{base}, {off}")
            self(f"s_addc_u32 s{d+1}, s{base+1}, 0")
        else:
            self(f"s_mov_b32 s{d}, s{base}")
            self(f"s_mov_b32 s{d+1}, s{base+1}")
        self(f"s_mov_b32 s{d+2}, {size}")
        self(f"s_mov_b32 s{d+3}, 0x20000")
    def stamp(self, i):
        self.lines.append(f";STAMP {i}")
    def add_diag(self, kidx, diag_off):
        nl = []
        for ln in self.lines:
            if ln.startswith(";STAMP"):
                i = int(ln.split()[1])
                nl += ["s_memtime s[88:89]", "s_waitcnt lgkmcnt(0)", f"s_mov_b32 s{80+i}, s88"]
            else: nl.append(ln)
        self.lines = nl
        pre = """s_memtime s[94:95]
        s_memrealtime s[96:97]
        v_lshrrev_b32 v1, 6, v0
        s_nop 0
        v_readfirstlane_b32 s99, v1
        s_mov_b32 s101, s2
        s_mov_b32 s80, 0
        s_mov_b32 s81, 0
        s_mov_b32 s82, 0
        s_mov_b32 s83, 0""".split("\n")
        assert self.lines[-1] == "s_endpgm"
        post = f"""s_waitcnt vmcnt(0) lgkmcnt(0)
        s_memtime s[90:91]
        s_memrealtime s[92:93]
        s_mov_b64 exec, 1
        s_add_u32 s84, s20, {diag_off + kidx*1024*16*32}
        s_addc_u32 s85, s21, 0
        s_mov_b32 s86, {1024*16*32}
        s_mov_b32 s87, 0x20000
        s_lshl_b32 s98, s101, 4
        s_add_u32 s98, s98, s99
        s_lshl_b32 s98, s98, 5
        s_waitcnt lgkmcnt(0)
        s_getreg_b32 s88, hwreg(HW_REG_XCC_ID)
        s_lshl_b32 s88, s88, 28
        s_and_b32 s94, s94, 0x0fffffff
        s_or_b32 s94, s94, s88
        v_mov_b32 v0, s94
        v_mov_b32 v1, s90
        v_mov_b32 v2, s96
        v_mov_b32 v3, s92
        v_mov_b32 v4, 0
        buffer_store_dwordx4 v[0:3], v4, s[84:87], s98 offen
        s_nop 1
        v_mov_b32 v0, s80
        v_mov_b32 v1, s81
        v_mov_b32 v2, s82
        v_mov_b32 v3, s83
        buffer_store_dwordx4 v[0:3], v4, s[84:87], s98 offen offset:16
        s_endpgm""".split("\n")
        self.lines = [x.strip() for x in pre] + self.lines[:-1] + [x.strip() for x in post]
    def text(self):
        out = [f".globl {self.name}", ".p2align 8", f".type {self.name},@function", f"{self.name}:"]
        for ln in self.lines:
            if ln.endswith(":") or ln.startswith("."):
                out.append(ln)
            else:
                out.append("  " + ln)
        return "\n".join(out)
    def desc(self):
        acc = (self.nvgpr + 3) // 4 * 4
        return f""".p2align 6
.amdhsa_kernel {self.name}
  .amdhsa_next_free_vgpr {self.nvgpr}
  .amdhsa_next_free_sgpr {self.nsgpr}
  .amdhsa_accum_offset {acc}
  .amdhsa_group_segment_fixed_size 0
  .amdhsa_kernarg_size 112
  .amdhsa_user_sgpr_count 2
  .amdhsa_user_sgpr_kernarg_segment_ptr 1
  .amdhsa_system_sgpr_workgroup_id_x 1
.end_amdhsa_kernel"""

def v(a, n=1):
    return f"v{a}" if n == 1 else f"v[{a}:{a+n-1}]"
def s(a, n=1):
    return f"s{a}" if n == 1 else f"s[{a}:{a+n-1}]"

def f2u(x):
    import struct
    return struct.unpack("<I", struct.pack("<f", x))[0]
def fhex(x):
    return f"0x{f2u(x):08x}"

TRANS = ("v_exp_", "v_log_", "v_rcp_", "v_rsq_", "v_sqrt_", "v_sin_", "v_cos_")
def regs_of(op):
    op = op.strip()
    op = op.lstrip("-").replace("abs(", "").replace(")", "").replace("|", "")
    m = re.fullmatch(r"([vsa])(\d+)", op)
    if m: return {(m.group(1), int(m.group(2)))}
    m = re.fullmatch(r"([vsa])\[(\d+):(\d+)\]", op)
    if m: return {(m.group(1), i) for i in range(int(m.group(2)), int(m.group(3)) + 1)}
    if op == "vcc": return {("s", 106), ("s", 107)}
    if op == "exec": return {("s", 126), ("s", 127)}
    if op == "m0": return {("s", 124)}
    return set()

def parse(ln):
    ln = ln.split(";")[0].strip()
    if not ln or ln.endswith(":") or ln.startswith("."): return None
    parts = ln.split(None, 1)
    mn = parts[0]
    rest = parts[1] if len(parts) > 1 else ""
    rest2 = re.sub(r"quad_perm:\[[^\]]*\]", "", rest)
    rest2 = re.sub(r"op_sel(_hi)?:\[[^\]]*\]", "", rest2)
    rest2 = re.sub(r"neg_(lo|hi):\[[^\]]*\]", "", rest2)
    ops = [o.strip() for o in rest2.split(",")]
    ops2 = []
    for o in ops:
        toks = o.split()
        ops2.append(toks[0] if toks else "")
    return mn, ops2, rest

def rw(mn, ops, rest):
    R = lambda l: set().union(*[regs_of(o) for o in l]) if l else set()
    if mn.startswith("buffer_store") or mn.startswith("global_store") or mn.startswith("ds_write") or mn.startswith("ds_add") or mn.startswith("ds_max"):
        return set(), R(ops)
    if mn.startswith("buffer_load") and " lds" in (" " + rest):
        return set(), R(ops) | {("s", 124)}
    if mn.startswith("buffer_atomic"):
        return (R(ops[:1]) if "sc0" in rest else set()), R(ops)
    if mn.startswith("s_cmp") or mn.startswith("s_cbranch") or mn in ("s_branch", "s_barrier", "s_waitcnt", "s_nop", "s_endpgm", "s_setprio", "s_sleep"):
        return set(), R(ops)
    if mn.startswith("v_cmp"):
        return R(ops[:1]), R(ops[1:])
    if mn.startswith("v_permlane") and "swap" in mn:
        return R(ops), R(ops)
    if mn.startswith("v_add_co") or mn.startswith("v_addc_co") or mn.startswith("v_sub_co"):
        return R(ops[:2]), R(ops[2:])
    w = R(ops[:1]); r = R(ops[1:])
    if mn.startswith("v_fmac") or mn.startswith("v_dot2c") or "d16" in mn or "UNUSED_PRESERVE" in rest or "_dpp" in mn:
        r |= w
    if mn.startswith("s_and_saveexec") or mn.startswith("s_or_saveexec"):
        w |= regs_of("exec"); r |= regs_of("exec")
    return w, r

def check_hazards(lines, name=""):
    errs = []
    hist = []
    pos = 0
    for idx, ln in enumerate(lines):
        p = parse(ln)
        if p is None: continue
        mn, ops, rest = p
        w, r = rw(mn, ops, rest)
        is_mfma = mn.startswith("v_mfma")
        is_valu = mn.startswith("v_") and not is_mfma
        is_vmem = mn.startswith("buffer_") or mn.startswith("global_")
        is_ds = mn.startswith("ds_")
        passes = 0
        if is_mfma:
            passes = 8 if "32x32" in mn else 4
        def need(h, n, why):
            d = pos - h[0] - 1
            if d < n:
                errs.append(f"{name}: line {idx}: '{ln}' needs {n} ws after '{h[7]}' ({why}), has {d}")
        for h in hist[-40:]:
            hpos, hmn, hw, hr, hkind, hpass, hC, hln = h
            if hkind == "valu":
                vw = {x for x in hw if x[0] in "va"}
                sw = {x for x in hw if x[0] == "s"}
                if is_mfma and vw & r: need(h, 2, "valu->mfma")
                if (mn.startswith("v_readfirstlane") or mn.startswith("v_readlane")) and vw & r: need(h, 1, "valu->readlane")
                if (mn.startswith("v_permlane") or "_dpp" in mn) and vw & r: need(h, 2, "valu->permlane/dpp")
                if is_vmem and sw & r: need(h, 5, "valu sgpr->vmem")
                if is_valu and sw & r: need(h, 2, "valu sgpr->valu")
                if is_valu and (mn.startswith("v_cndmask") and ops[-1] == "vcc" or "addc" in mn) and (sw & regs_of("vcc")): need(h, 2, "vcc->cndmask")
                if hmn.startswith(TRANS) and is_valu and not mn.startswith(TRANS) and vw & r: need(h, 1, "trans->valu")
                if hmn.startswith(TRANS) and (is_mfma) and vw & r: need(h, 2, "trans->mfma")
                if ("sdwa" in hmn) and is_valu and vw & (r | w): need(h, 1, "sdwa->valu")
                if (sw & regs_of("exec")) and is_mfma: need(h, 4, "valu exec->mfma")
            if hkind == "mfma":
                n = 8 if hpass == 4 else 12
                if is_mfma:
                    ab = regs_of(ops[1]) | regs_of(ops[2])
                    c = regs_of(ops[3])
                    if hw & ab: need(h, n, "mfma D->mfma A/B")
                    if hw & c and (hw != c or hpass != passes): need(h, 6 if hpass == 4 else 10, "mfma D->mfma C partial")
                    if hw & w and not (hw == c and hw == w): need(h, n, "mfma D WAW mfma")
                else:
                    if (is_valu or is_vmem or is_ds) and hw & (r | w): need(h, n, "mfma D->other")
                    if is_valu and hC & w: need(h, 3 if hpass == 4 else 7, "mfma C WAR valu")
            if hkind == "salu":
                if ("s", 124) in hw and is_vmem and " lds" in (" " + rest): need(h, 1, "m0->lds dma")
            if hkind == "store4" and is_valu and (hC & w): need(h, 2, "wide store WAR")
        kind = "mfma" if is_mfma else "valu" if is_valu else "vmem" if is_vmem else "ds" if is_ds else "salu"
        C = regs_of(ops[3]) if is_mfma else set()
        if is_vmem and "store" in mn and ("x4" in mn or "x3" in mn):
            kind = "store4"; C = regs_of(ops[0])
        hist.append((pos, mn, w, r, kind, passes, C, ln))
        if mn == "s_nop":
            pos += int(ops[0]) + 1
        else:
            pos += 1
    return errs

class DSTrack:
    def __init__(self, k):
        self.k = k
        self.fifo = []
    def read(self, ins, dst, n):
        self.k(ins)
        self.fifo.append(set(range(dst, dst + n)))
    def need(self, *ranges):
        regs = set()
        for (a, n) in ranges: regs |= set(range(a, a + n))
        last = -1
        for i, s_ in enumerate(self.fifo):
            if s_ & regs: last = i
        if last < 0: return
        after = len(self.fifo) - 1 - last
        self.k(f"s_waitcnt lgkmcnt({min(after, 15)})")
        keep = min(after, 15)
        self.fifo = self.fifo[len(self.fifo) - keep:] if keep else []
```

```python
from fw import *
from layout import *
LOG2E = 1.4426950408889634

def bf16r(k, dst, src):
    k(f"v_cvt_pk_bf16_f32 v{dst}, v{src}, v{src}")
    k(f"v_lshlrev_b32 v{dst}, 16, v{dst}")

def gen_k1():
    NG, NPQ, NPO, NLN = 224, 180, 162, 64
    NWM = 0
    k = Kern("prep_kernel", NG + NPQ + NPO + NLN + NWM, 256, 1024, 128)
    k("""
    s_load_dwordx4 s[44:47], s[0:1], 48
    s_load_dwordx8 s[4:11], s[0:1], 0
    s_load_dwordx2 s[12:13], s[0:1], 32
    s_load_dwordx4 s[16:19], s[0:1], 72
    s_load_dwordx2 s[20:21], s[0:1], 104
    v_and_b32 v1, 63, v0
    v_lshrrev_b32 v2, 6, v0
    s_nop 0
    v_readfirstlane_b32 s3, v2
    """)
    k(f"s_cmp_ge_u32 s2, {NG+NPQ+NPO+NLN+NWM}")
    k("s_cbranch_scc1 L_k1_end")
    k("s_waitcnt lgkmcnt(0)")
    k(f"s_cmp_ge_u32 s2, {NG+NPQ+NPO+NLN}")
    k("s_cbranch_scc1 L_k1_warm")
    k(f"s_cmp_ge_u32 s2, {NG+NPQ+NPO}")
    k("s_cbranch_scc1 L_k1_ln")
    k(f"s_cmp_ge_u32 s2, {NG}")
    k("s_cbranch_scc1 L_k1_pack")
    k("""
    s_and_b32 s22, s2, 7
    s_lshr_b32 s23, s2, 3
    s_and_b32 s23, s23, 3
    s_lshr_b32 s24, s2, 5
    s_lshl_b32 s24, s24, 3
    s_add_u32 s24, s24, s22
    s_cmp_ge_u32 s24, 54
    s_cbranch_scc1 L_k1_end
    s_lshl_b32 s24, s24, 2
    s_add_u32 s24, s24, s23
    s_lshl_b32 s25, s24, 4
    """)
    k.srd(28, 18, 576 * 6912)
    k.srd(32, 16, 1152)
    k.srd(36, 20, MOD_SZ, MOD)
    k("""
    v_and_b32 v3, 3, v0
    v_lshrrev_b32 v4, 2, v0
    s_movk_i32 s26, 6912
    v_mul_lo_u32 v5, v4, s26
    v_lshl_add_u32 v5, v3, 3, v5
    v_lshlrev_b32 v6, 1, v4
    s_lshl_b32 s26, s25, 1
    """)
    for p in range(9):
        k(f"buffer_load_ushort v{10+p}, v6, s[32:35], 0 offen offset:{128*p}")
    for p in range(9):
        k(f"buffer_load_dwordx2 v[{20+2*p}:{21+2*p}], v5, s[28:31], s26 offen")
        if p < 8: k(f"s_add_u32 s26, s26, {64*6912}")
    k("v_mov_b32 v40, 0\nv_mov_b32 v41, 0\nv_mov_b32 v42, 0\nv_mov_b32 v43, 0")
    k(f"s_mov_b32 s27, {fhex(-LOG2E)}")
    k("s_waitcnt vmcnt(9)")
    for p in range(9):
        c = 10 + p
        k(f"v_lshlrev_b32 v{c}, 16, v{c}")
        k(f"v_mul_f32 v44, s27, v{c}")
        k(f"v_exp_f32 v44, v44")
        k("s_nop 0")
        k(f"v_add_f32 v44, 1.0, v44")
        k(f"v_rcp_f32 v44, v44")
        k("s_nop 0")
        k(f"v_mul_f32 v{c}, v{c}, v44")
        bf16r(k, c, c)
    for p in range(9):
        k(f"s_waitcnt vmcnt({8-p})")
        for d in range(2):
            w = 20 + 2 * p + d
            k(f"v_lshlrev_b32 v44, 16, v{w}")
            k(f"v_and_b32 v45, 0xffff0000, v{w}")
            k(f"v_fmac_f32 v{40+2*d}, v{10+p}, v44")
            k(f"v_fmac_f32 v{41+2*d}, v{10+p}, v45")
    k.nop(2)
    for sh in (4, 8):
        for i in range(4):
            k(f"v_add_f32_dpp v{40+i}, v{40+i}, v{40+i} row_ror:{sh} row_mask:0xf bank_mask:0xf")
        k.nop(2)
    k("""
    v_lshrrev_b32 v7, 4, v0
    v_lshlrev_b32 v7, 6, v7
    v_lshl_add_u32 v7, v3, 4, v7
    v_and_b32 v8, 15, v0
    v_cmp_gt_u32 vcc, 4, v8
    s_and_saveexec_b64 s[40:41], vcc
    ds_write_b128 v7, v[40:43]
    s_mov_b64 exec, s[40:41]
    s_waitcnt lgkmcnt(0)
    s_barrier
    s_cmp_lg_u32 s3, 0
    s_cbranch_scc1 L_k1_end
    v_cmp_gt_u32 vcc, 16, v0
    s_and_saveexec_b64 s[40:41], vcc
    v_lshlrev_b32 v7, 2, v0
    """)
    for p in range(16):
        k(f"ds_read_b32 v{50+p}, v7 offset:{64*p}")
    k("s_waitcnt lgkmcnt(0)")
    for st in (8, 4, 2, 1):
        for i in range(st):
            k(f"v_add_f32 v{50+i}, v{50+i}, v{50+i+st}")
    bf16r(k, 50, 50)
    k("""
    s_mul_i32 s26, s24, 1821
    s_lshr_b32 s26, s26, 16
    s_cmp_eq_u32 s26, 1
    s_cselect_b32 s27, 1, 0
    s_cmp_eq_u32 s26, 4
    s_cselect_b32 s27, 1, s27
    s_cmp_eq_u32 s27, 0
    s_cbranch_scc1 L_k1_g_store
    v_add_f32 v50, 1.0, v50
    """)
    bf16r(k, 50, 50)
    k("""
    L_k1_g_store:
    s_lshl_b32 s27, s25, 2
    buffer_store_dword v50, v7, s[36:39], s27 offen
    s_sub_u32 s26, s26, 3
    s_cmp_ge_u32 s26, 2
    s_cbranch_scc1 L_k1_end
    """)
    k.srd(40, 20, MODH_SZ, MODH)
    k("""
    s_sub_u32 s27, s25, 1728
    s_mul_i32 s28, s26, 1152
    s_sub_u32 s27, s27, s28
    s_add_u32 s27, s27, 576
    s_lshl_b32 s27, s27, 1
    v_lshrrev_b32 v51, 16, v50
    v_lshlrev_b32 v7, 1, v0
    buffer_store_short v51, v7, s[40:43], s27 offen
    s_branch L_k1_end
    """)
    k(f"""
    L_k1_pack:
    s_sub_u32 s22, s2, {NG}
    s_lshl_b32 s22, s22, 2
    s_add_u32 s22, s22, s3
    v_and_b32 v3, 15, v1
    v_lshrrev_b32 v4, 4, v1
    v_mov_b32 v10, 0
    v_mov_b32 v11, 0
    v_mov_b32 v12, 0
    v_mov_b32 v13, 0
    s_cmp_ge_u32 s22, 720
    s_cbranch_scc1 L_k1_pack_o
    """)
    k.srd(36, 20, WQKV_SZ, WQKV)
    k.srd(28, 6, 576 * 1152)
    k("""
    s_mul_i32 s23, s22, 3641
    s_lshr_b32 s23, s23, 16
    s_mul_i32 s24, s23, 18
    s_sub_u32 s24, s22, s24
    s_cmp_ge_u32 s23, 36
    s_cbranch_scc1 L_k1_pack_kv
    s_branch L_k1_pack_big
    L_k1_pack_o:
    s_sub_u32 s22, s22, 720
    """)
    k.srd(36, 20, WO_SZ, WOP)
    k.srd(28, 12, 576 * 1152)
    k("""
    s_mul_i32 s23, s22, 3641
    s_lshr_b32 s23, s23, 16
    s_mul_i32 s24, s23, 18
    s_sub_u32 s24, s22, s24
    L_k1_pack_big:
    v_lshlrev_b32 v5, 3, v4
    s_lshl_b32 s25, s24, 5
    v_add_u32 v5, s25, v5
    s_movk_i32 s26, 1152
    v_mul_lo_u32 v5, v5, s26
    v_lshl_add_u32 v5, v3, 1, v5
    s_lshl_b32 s25, s23, 5
    s_add_u32 s26, s25, 4608
    """)
    for j in range(8):
        so = "s25" if j < 4 else "s26"
        k(f"buffer_load_ushort v{20+j}, v5, s[28:31], {so} offen offset:{(j&3)*1152}")
    k("s_branch L_k1_pack_st")
    k("""
    L_k1_pack_kv:
    s_cmp_ge_u32 s23, 38
    s_cselect_b32 s28, s10, s8
    s_cselect_b32 s29, s11, s9
    s_mov_b32 s30, 20736
    s_and_b32 s25, s23, 1
    s_lshl_b32 s25, s25, 4
    v_add_u32 v6, s25, v3
    v_lshlrev_b32 v5, 3, v4
    s_lshl_b32 s25, s24, 5
    v_add_u32 v5, s25, v5
    v_mul_u32_u24 v5, 36, v5
    v_lshl_add_u32 v5, v6, 1, v5
    v_cmp_gt_u32 vcc, 18, v6
    v_mov_b32 v7, 0x40000000
    s_nop 0
    v_cndmask_b32 v5, v7, v5, vcc
    """)
    for j in range(8):
        k(f"buffer_load_ushort v{20+j}, v5, s[28:31], 0 offen offset:{j*36}")
    k("""
    L_k1_pack_st:
    v_lshlrev_b32 v6, 4, v1
    s_lshl_b32 s25, s22, 10
    s_waitcnt vmcnt(0)
    v_lshl_or_b32 v10, v21, 16, v20
    v_lshl_or_b32 v11, v23, 16, v22
    v_lshl_or_b32 v12, v25, 16, v24
    v_lshl_or_b32 v13, v27, 16, v26
    buffer_store_dwordx4 v[10:13], v6, s[36:39], s25 offen
    s_branch L_k1_end
    """)
    k(f"""
    L_k1_warm:
    s_sub_u32 s22, s2, {NG+NPQ+NPO+NLN}
    s_lshl_b32 s22, s22, 2
    s_add_u32 s22, s22, s3
    s_cmp_ge_u32 s22, 648
    s_cselect_b32 s28, s46, s44
    s_cselect_b32 s29, s47, s45
    s_cselect_b32 s23, 648, 0
    s_mov_b32 s30, 5308416
    s_mov_b32 s31, 0x20000
    s_sub_u32 s22, s22, s23
    s_lshl_b32 s22, s22, 13
    v_lshlrev_b32 v5, 4, v1
    """)
    for j in range(8):
        k(f"buffer_load_dwordx4 v[{8+4*j}:{11+4*j}], v5, s[28:31], s22 offen offset:{1024*(j&3)}")
        if j == 3: k("s_add_u32 s22, s22, 4096")
    k("s_waitcnt vmcnt(0)\ns_branch L_k1_end")
    k(f"""
    L_k1_ln:
    s_sub_u32 s22, s2, {NG+NPQ+NPO}
    s_mul_i32 s23, s22, {32*1152}
    v_and_b32 v3, 7, v0
    v_lshrrev_b32 v4, 3, v0
    v_mul_u32_u24 v5, 1152, v4
    v_lshl_add_u32 v5, v3, 4, v5
    """)
    k.srd(28, 4, S * 1152)
    k.srd(36, 20, ST1_SZ, ST1)
    for j in range(9):
        k(f"buffer_load_dwordx4 v[{12+4*j}:{15+4*j}], v5, s[28:31], s23 offen offset:{128*j}")
    for j in range(9):
        k(f"s_waitcnt vmcnt({8-j})")
        for d in range(4):
            k(f"v_lshlrev_b32 v{48+8*j+2*d}, 16, v{12+4*j+d}")
            k(f"v_and_b32 v{49+8*j+2*d}, 0xffff0000, v{12+4*j+d}")
    def red8(r):
        k.nop(2)
        k(f"v_add_f32_dpp v{r}, v{r}, v{r} quad_perm:[1,0,3,2] row_mask:0xf bank_mask:0xf")
        k.nop(2)
        k(f"v_add_f32_dpp v{r}, v{r}, v{r} quad_perm:[2,3,0,1] row_mask:0xf bank_mask:0xf")
        k.nop(2)
        k(f"v_add_f32_dpp v{r}, v{r}, v{r} row_half_mirror row_mask:0xf bank_mask:0xf")
    for a in range(4):
        k(f"v_add_f32 v{8+a}, v{48+a}, v{52+a}")
    for i in range(8, 72):
        k(f"v_add_f32 v{8+i%4}, v{8+i%4}, v{48+i}")
    k("v_add_f32 v8, v8, v9\nv_add_f32 v10, v10, v11\nv_add_f32 v8, v8, v10")
    red8(8)
    k(f"v_mul_f32 v6, {fhex(1.0/576)}, v8")
    for i in range(72):
        k(f"v_sub_f32 v{48+i}, v{48+i}, v6")
    for a in range(4):
        k(f"v_mul_f32 v{8+a}, v{48+a}, v{48+a}")
    for i in range(4, 72):
        k(f"v_fmac_f32 v{8+i%4}, v{48+i}, v{48+i}")
    k("v_add_f32 v8, v8, v9\nv_add_f32 v10, v10, v11\nv_add_f32 v8, v8, v10")
    red8(8)
    k(f"v_mul_f32 v8, {fhex(1.0/576)}, v8")
    bf16r(k, 8, 8)
    k(f"v_add_f32 v8, {fhex(1e-5)}, v8")
    bf16r(k, 8, 8)
    k("v_sqrt_f32 v8, v8\ns_nop 0")
    bf16r(k, 8, 8)
    k("v_rcp_f32 v8, v8")
    bf16r(k, 6, 6)
    k("""
    v_mul_f32 v9, v6, v8
    v_sub_f32 v9, 0, v9
    v_lshlrev_b32 v7, 3, v4
    s_lshl_b32 s23, s22, 8
    v_cmp_eq_u32 vcc, 0, v3
    s_and_saveexec_b64 s[40:41], vcc
    buffer_store_dwordx2 v[8:9], v7, s[36:39], s23 offen
    L_k1_end:
    s_endpgm
    """)
    return k
```

```python
from fw import *
from layout import *
from k1 import bf16r, LOG2E
QSCALE = (18 ** -0.5) * LOG2E

def small_gemm(k, Wbase, Tbase, nT, acc, A0, A1, swap, ntt=2):
    seq = [(ks, tt) for ks in range(18) for tt in range(ntt)]
    def rd(i):
        ks, tt = seq[i]
        a = A0 if ks % 2 == 0 else A1
        b = Tbase + 4 * (i % nT)
        k(f"ds_read_b128 v[{b}:{b+3}], v{a} offset:{(ks>>1)*128 + tt*18432}")
    for i in range(min(nT, len(seq))):
        rd(i)
    for i, (ks, tt) in enumerate(seq):
        issued = min(len(seq), i + nT)
        k(f"s_waitcnt lgkmcnt({issued - i - 1})")
        if tt == 0:
            k(f"s_waitcnt vmcnt({17-ks})")
        b = Tbase + 4 * (i % nT)
        w = Wbase + 4 * ks
        c = "0" if ks == 0 else f"v[{acc+4*tt}:{acc+4*tt+3}]"
        if swap:
            k(f"v_mfma_f32_16x16x32_bf16 v[{acc+4*tt}:{acc+4*tt+3}], v[{b}:{b+3}], v[{w}:{w+3}], {c}")
        else:
            k(f"v_mfma_f32_16x16x32_bf16 v[{acc+4*tt}:{acc+4*tt+3}], v[{w}:{w+3}], v[{b}:{b+3}], {c}")
        if i + nT < len(seq):
            rd(i + nT)
    k.nop(8)

def gemm_addr(k):
    k("""
    v_and_b32 v3, 15, v1
    v_lshrrev_b32 v4, 4, v1
    v_and_b32 v7, 7, v3
    v_xor_b32 v5, v4, v7
    v_xor_b32 v6, 4, v5
    v_mul_u32_u24 v7, 1152, v3
    v_lshl_add_u32 v5, v5, 4, v7
    v_lshl_add_u32 v6, v6, 4, v7
    """)

def wave_max(k, r, t0, t1, t2):
    k(f"""
    v_xor_b32 v{t0}, 16, v1
    v_lshlrev_b32 v{t0}, 2, v{t0}
    v_xor_b32 v{t1}, 32, v1
    v_lshlrev_b32 v{t1}, 2, v{t1}
    ds_bpermute_b32 v{t2}, v{t0}, v{r}
    s_waitcnt lgkmcnt(0)
    v_max_f32 v{r}, v{r}, v{t2}
    ds_bpermute_b32 v{t2}, v{t1}, v{r}
    s_waitcnt lgkmcnt(0)
    v_max_f32 v{r}, v{r}, v{t2}
    """)
    for sh in (1, 2, 4, 8):
        k.nop(2)
        k(f"v_max_f32_dpp v{r}, v{r}, v{r} row_ror:{sh} row_mask:0xf bank_mask:0xf")

def gen_k2():
    HT = 64 * 1152
    k = Kern("qkv_kernel", 256, 576, HT + 6144, 152)
    XB, STB, MB, TMP = 80, 112, 128, 144
    ACC = 112; PK = 80
    k(f"""
    s_load_dwordx2 s[4:5], s[0:1], 0
    s_load_dwordx4 s[8:11], s[0:1], 48
    s_load_dwordx2 s[20:21], s[0:1], 104
    v_and_b32 v1, 63, v0
    v_lshrrev_b32 v2, 6, v0
    s_nop 0
    v_readfirstlane_b32 s3, v2
    s_cmp_ge_u32 s2, 256
    s_cbranch_scc1 L_k2_end
    s_movk_i32 s22, 911
    v_mul_lo_u32 v2, v0, s22
    v_lshrrev_b32 v2, 16, v2
    v_mul_u32_u24 v3, 72, v2
    v_sub_u32 v3, v0, v3
    s_and_b32 s22, s2, 7
    s_lshl_b32 s22, s22, 2
    s_lshr_b32 s23, s2, 3
    s_and_b32 s23, s23, 3
    s_add_u32 s22, s22, s23
    s_lshr_b32 s23, s2, 5
    s_mul_i32 s23, s23, 5
    s_add_u32 s23, s23, s3
    v_mul_u32_u24 v4, 1152, v2
    v_lshl_add_u32 v4, v3, 4, v4
    s_mul_i32 s40, s22, {HT}
    v_lshlrev_b32 v5, 3, v2
    s_lshl_b32 s41, s22, 9
    v_lshlrev_b32 v6, 5, v3
    s_waitcnt lgkmcnt(0)
    """)
    k.srd(24, 4, S * 1152)
    k.srd(28, 20, ST1_SZ, ST1)
    k.srd(32, 20, MOD_SZ, MOD)
    k.srd(36, 20, WQKV_SZ, WQKV)
    k(f"""
    v_lshlrev_b32 v7, 4, v1
    s_cmp_ge_u32 s3, 6
    s_cbranch_scc1 L_k2_x
    s_lshl_b32 s42, s3, 10
    s_cmp_eq_u32 s3, 5
    s_cselect_b32 s44, s28, s32
    s_cselect_b32 s45, s29, s33
    s_cselect_b32 s46, s30, s34
    s_mov_b32 s47, 0x20000
    s_cselect_b32 s43, s41, s42
    s_add_u32 m0, s42, {HT}
    s_nop 0
    buffer_load_dwordx4 v7, s[44:47], s43 offen lds
    L_k2_x:
    """)
    for p in range(8):
        k(f"buffer_load_dwordx4 v[{XB+4*p}:{XB+3+4*p}], v4, s[24:27], s40 offen")
        if p < 7: k("s_add_u32 s40, s40, 9216")
    k(f"""
    s_mul_i32 s40, s23, 18432
    v_add_u32 v5, {HT+5120}, v5
    v_add_u32 v6, {HT}, v6
    s_waitcnt vmcnt(8)
    s_barrier
    ds_read_b128 v[{MB}:{MB+3}], v6
    ds_read_b128 v[{MB+4}:{MB+7}], v6 offset:16
    ds_read_b128 v[{MB+8}:{MB+11}], v6 offset:2304
    ds_read_b128 v[{MB+12}:{MB+15}], v6 offset:2320
    """)
    for p in range(8):
        k(f"ds_read_b64 v[{STB+2*p}:{STB+1+2*p}], v5 offset:{64*p}")
    k("""
    v_xor_b32 v5, v3, v2
    v_mul_u32_u24 v4, 1152, v2
    v_lshl_add_u32 v4, v5, 4, v4
    s_cmp_ge_u32 s3, 5
    s_cbranch_scc1 L_k2_ln2
    """)
    def ln(withw):
        nw = 0
        for p in range(8):
            k(f"s_waitcnt vmcnt({7-p+nw})" + (" lgkmcnt(0)" if p == 0 else ""))
            if withw:
                for ks in range(nw, min(18, nw + 3)):
                    k(f"buffer_load_dwordx4 v[{8+4*ks}:{11+4*ks}], v7, s[36:39], s40 offen offset:{(ks&3)*1024}")
                    if ks & 3 == 3: k("s_add_u32 s40, s40, 4096")
                nw = min(18, nw + 3)
            for d in range(4):
                x = XB + 4 * p + d
                k(f"v_lshlrev_b32 v{TMP}, 16, v{x}")
                k(f"v_and_b32 v{TMP+1}, 0xffff0000, v{x}")
                k(f"v_fma_f32 v{TMP}, v{TMP}, v{STB+2*p}, v{STB+1+2*p}")
                k(f"v_fma_f32 v{TMP+1}, v{TMP+1}, v{STB+2*p}, v{STB+1+2*p}")
                k(f"v_fma_f32 v{TMP}, v{TMP}, v{MB+8+2*d}, v{MB+2*d}")
                k(f"v_fma_f32 v{TMP+1}, v{TMP+1}, v{MB+9+2*d}, v{MB+1+2*d}")
                k(f"v_cvt_pk_bf16_f32 v{x}, v{TMP}, v{TMP+1}")
            k(f"ds_write_b128 v4, v[{XB+4*p}:{XB+3+4*p}] offset:{9216*p}")
    ln(True)
    k("s_branch L_k2_lnd\nL_k2_ln2:")
    ln(False)
    k("L_k2_lnd:")
    gemm_addr(k)
    k.stamp(0)
    k("s_waitcnt lgkmcnt(0)\ns_barrier")
    k.stamp(1)
    k("s_cmp_ge_u32 s3, 5\ns_cbranch_scc1 L_k2_side")
    k("s_cmp_ge_u32 s23, 38\ns_cbranch_scc1 L_k2_v")
    small_gemm(k, 8, 80, 8, ACC, 5, 6, False, 4)
    k.stamp(2)
    def pack():
        for tt in range(4):
            k(f"v_cvt_pk_bf16_f32 v{PK+2*tt}, v{ACC+4*tt}, v{ACC+1+4*tt}")
            k(f"v_cvt_pk_bf16_f32 v{PK+1+2*tt}, v{ACC+2+4*tt}, v{ACC+3+4*tt}")
    k("s_cmp_ge_u32 s23, 36\ns_cbranch_scc1 L_k2_k")
    k.srd(24, 20, Q_SZ, Q)
    k(f"""
    s_mov_b32 s40, {fhex(QSCALE)}
    v_mul_u32_u24 v7, 1152, v3
    v_lshl_add_u32 v7, v4, 3, v7
    s_mul_i32 s41, s22, {HT}
    s_lshl_b32 s42, s23, 5
    s_add_u32 s41, s41, s42
    """)
    for i in range(16):
        k(f"v_mul_f32 v{ACC+i}, s40, v{ACC+i}")
    pack()
    for tt in range(4):
        k(f"buffer_store_dwordx2 v[{PK+2*tt}:{PK+1+2*tt}], v7, s[24:27], s41 offen")
        if tt < 3: k("s_add_u32 s41, s41, 18432")
    k("s_branch L_k2_fin")
    k("L_k2_k:")
    k.srd(24, 20, KV_SZ, KV)
    k.srd(28, 20, KMAX_SZ, KMAX)
    k(f"s_mul_i32 s41, s22, {2*KV_TILE}\ns_add_u32 s43, s41, {KV_TILE}")
    pack()
    for tt in range(4):
        k(f"v_mov_b32 v{90+tt}, 0")
        k(f"v_dot2c_f32_bf16 v{90+tt}, v{PK+2*tt}, v{PK+2*tt}")
        k(f"v_dot2c_f32_bf16 v{90+tt}, v{PK+1+2*tt}, v{PK+1+2*tt}")
    k("""
    v_xor_b32 v94, 16, v1
    v_lshlrev_b32 v94, 2, v94
    v_xor_b32 v95, 32, v1
    v_lshlrev_b32 v95, 2, v95
    """)
    for a in (94, 95):
        for tt in range(4): k(f"ds_bpermute_b32 v{96+tt}, v{a}, v{90+tt}")
        k("s_waitcnt lgkmcnt(0)")
        for tt in range(4): k(f"v_add_f32 v{90+tt}, v{90+tt}, v{96+tt}")
    k("v_max_f32 v90, v90, v91\nv_max3_f32 v90, v90, v92, v93")
    for sh in (1, 2, 4, 8):
        k.nop(2)
        k(f"v_max_f32_dpp v90, v90, v90 row_ror:{sh} row_mask:0xf bank_mask:0xf")
    k(f"""
    s_lshl_b32 s42, s22, 4
    s_cmp_eq_u32 s23, 37
    s_cbranch_scc1 L_k2_k1
    v_lshrrev_b32 v8, 1, v4
    v_and_b32 v9, 1, v4
    v_lshlrev_b32 v7, 4, v3
    v_lshl_add_u32 v7, v8, 9, v7
    v_lshl_add_u32 v7, v9, 3, v7
    buffer_store_dwordx2 v[{PK}:{PK+1}], v7, s[24:27], s41 offen
    buffer_store_dwordx2 v[{PK+2}:{PK+3}], v7, s[24:27], s41 offen offset:256
    buffer_store_dwordx2 v[{PK+4}:{PK+5}], v7, s[24:27], s43 offen
    buffer_store_dwordx2 v[{PK+6}:{PK+7}], v7, s[24:27], s43 offen offset:256
    v_mov_b32 v7, 0
    v_cmp_eq_u32 vcc, 0, v1
    s_and_saveexec_b64 s[44:45], vcc
    buffer_store_dword v90, v7, s[28:31], s42 offen
    s_branch L_k2_fin
    L_k2_k1:
    v_mov_b32 v{PK+1}, 0x3f803f80
    v_mov_b32 v{PK+3}, 0x3f803f80
    v_mov_b32 v{PK+5}, 0x3f803f80
    v_mov_b32 v{PK+7}, 0x3f803f80
    v_lshlrev_b32 v7, 3, v3
    v_cmp_gt_u32 vcc, 16, v1
    s_and_saveexec_b64 s[44:45], vcc
    buffer_store_dwordx2 v[{PK}:{PK+1}], v7, s[24:27], s41 offen offset:1024
    buffer_store_dwordx2 v[{PK+2}:{PK+3}], v7, s[24:27], s41 offen offset:1152
    buffer_store_dwordx2 v[{PK+4}:{PK+5}], v7, s[24:27], s43 offen offset:1024
    buffer_store_dwordx2 v[{PK+6}:{PK+7}], v7, s[24:27], s43 offen offset:1152
    v_mov_b32 v7, 0
    v_cmp_eq_u32 vcc, 0, v1
    s_and_saveexec_b64 s[44:45], vcc
    buffer_store_dword v90, v7, s[28:31], s42 offen offset:4
    s_branch L_k2_fin
    """)
    k("L_k2_v:")
    small_gemm(k, 8, 80, 8, ACC, 5, 6, True, 4)
    k.srd(24, 20, KV_SZ, KV)
    k.srd(28, 20, KMAX_SZ, KMAX)
    k(f"s_mul_i32 s41, s22, {2*KV_TILE}\ns_add_u32 s43, s41, {KV_TILE}")
    pack()
    k(f"v_max3_f32 v90, |v{ACC}|, |v{ACC+1}|, |v{ACC+2}|")
    for i in range(3, 15, 2):
        k(f"v_max3_f32 v90, |v{ACC+i}|, |v{ACC+i+1}|, v90")
    k(f"v_max_f32 v90, |v{ACC+15}|, v90")
    wave_max(k, 90, 92, 93, 94)
    k(f"""
    s_lshl_b32 s42, s22, 4
    s_lshl_b32 s44, s23, 2
    s_add_u32 s42, s42, s44
    s_sub_u32 s42, s42, 144
    v_mov_b32 v7, 0
    v_cmp_eq_u32 vcc, 0, v1
    s_and_saveexec_b64 s[44:45], vcc
    buffer_store_dword v90, v7, s[28:31], s42 offen
    s_mov_b64 exec, s[44:45]
    v_and_b32 v8, 1, v4
    v_lshrrev_b32 v9, 1, v4
    v_mul_u32_u24 v7, 304, v8
    v_lshl_add_u32 v7, v3, 4, v7
    v_lshl_add_u32 v7, v9, 3, v7
    s_cmp_eq_u32 s23, 39
    s_cbranch_scc1 L_k2_v1
    buffer_store_dwordx2 v[{PK}:{PK+1}], v7, s[24:27], s41 offen offset:1280
    buffer_store_dwordx2 v[{PK+2}:{PK+3}], v7, s[24:27], s41 offen offset:1888
    buffer_store_dwordx2 v[{PK+4}:{PK+5}], v7, s[24:27], s43 offen offset:1280
    buffer_store_dwordx2 v[{PK+6}:{PK+7}], v7, s[24:27], s43 offen offset:1888
    s_branch L_k2_fin
    L_k2_v1:
    v_mov_b32 v10, 0x3f803f80
    v_cmp_eq_u32 vcc, 2, v3
    s_nop 1
    """)
    for i in range(8): k(f"v_cndmask_b32 v{PK+i}, v{PK+i}, v10, vcc")
    k(f"""
    v_cmp_gt_u32 vcc, 3, v3
    s_and_saveexec_b64 s[44:45], vcc
    buffer_store_dwordx2 v[{PK}:{PK+1}], v7, s[24:27], s41 offen offset:1536
    buffer_store_dwordx2 v[{PK+2}:{PK+3}], v7, s[24:27], s41 offen offset:2144
    buffer_store_dwordx2 v[{PK+4}:{PK+5}], v7, s[24:27], s43 offen offset:1536
    buffer_store_dwordx2 v[{PK+6}:{PK+7}], v7, s[24:27], s43 offen offset:2144
    L_k2_fin:
    L_k2_side:
    L_k2_end:
    s_endpgm
    """)
    return k
```

```python
import os
from fw import *
from layout import *

def gen_k3():
    k = Kern("attn_kernel", 256, 512, 163840, 168)
    HALF = 32 * KV_TILE
    Q1 = [8, 16]; Q2 = [12, 20]
    K1 = [24, 28]; K2 = [32, 36]
    V = [[40, 44], [48, 52]]
    Sb = [56, 72]
    P = 88
    OA = [96, 112]
    AK1, AK2, AV = 128, 129, 130
    CF, WF, CA, AD, AT_, AC = 132, 136, 140, 144, 145, 146
    X = 148
    WARM = os.environ.get("K3_WARM", "gud")
    NOSIDE = os.environ.get("K3_NOSIDE")
    PRIO = os.environ.get("K3_PRIO", "")
    k(f"""
    s_load_dwordx2 s[20:21], s[0:1], 104
    s_load_dwordx4 s[64:67], s[0:1], 48
    s_load_dwordx2 s[68:69], s[0:1], 64
    v_and_b32 v1, 63, v0
    v_lshrrev_b32 v2, 6, v0
    v_lshlrev_b32 v7, 4, v1
    v_readfirstlane_b32 s3, v2
    s_cmp_ge_u32 s2, 256
    s_cbranch_scc1 L_k3_end
    s_and_b32 s4, s3, 3
    s_lshr_b32 s5, s3, 2
    s_lshl_b32 s22, s2, 3
    s_lshl_b32 s6, s4, 1
    s_add_u32 s22, s22, s6
    s_mul_i32 s22, s22, 1152
    s_add_u32 s6, s22, 1152
    v_and_b32 v3, 31, v1
    v_lshrrev_b32 v4, 5, v1
    v_mul_u32_u24 v6, 36, v3
    v_lshl_add_u32 v5, v4, 4, v6
    s_mul_i32 s7, s5, {HALF}
    s_lshl_b32 s23, s4, 10
    s_add_u32 s23, s23, s7
    s_waitcnt lgkmcnt(0)
    """)
    k.srd(24, 20, Q_SZ, Q)
    k.srd(28, 20, KMAX_SZ, KMAX)
    k.srd(32, 20, KV_SZ, KV)
    k.srd(36, 20, O_SZ, O)
    k(f"""
    buffer_load_dwordx4 v[{Q1[0]}:{Q1[0]+3}], v5, s[24:27], s22 offen
    buffer_load_dword v{Q2[0]}, v6, s[24:27], s22 offen offset:32
    buffer_load_dwordx4 v[{Q1[1]}:{Q1[1]+3}], v5, s[24:27], s6 offen
    buffer_load_dword v{Q2[1]}, v6, s[24:27], s6 offen offset:32
    buffer_load_dwordx4 v[{X}:{X+3}], v7, s[28:31], 0 offen
    s_mov_b32 s49, s23
    """)
    def dma1():
        k("s_mov_b32 m0, s49\ns_nop 0\nbuffer_load_dwordx4 v7, s[32:35], s49 offen lds\ns_add_u32 s49, s49, 4096")
    for j in range(4): dma1()
    k(f"""
    v_add_u32 v{AK1}, s7, v7
    v_lshlrev_b32 v{AK2}, 3, v3
    v_add_u32 v{AK2}, 1024, v{AK2}
    v_add_u32 v{AK2}, s7, v{AK2}
    v_subrev_u32 v{X+4}, 20, v3
    v_subrev_u32 v{X+5}, 12, v3
    v_cmp_gt_u32 vcc, 24, v3
    s_nop 1
    v_cndmask_b32 v{X+4}, v{X+5}, v{X+4}, vcc
    v_min_u32 v{X+4}, 18, v{X+4}
    v_cmp_gt_u32 vcc, 19, v3
    s_nop 1
    v_cndmask_b32 v{X+4}, v{X+4}, v3, vcc
    v_mul_u32_u24 v{AV}, 304, v4
    v_lshl_add_u32 v{AV}, v{X+4}, 4, v{AV}
    v_add_u32 v{AV}, 1280, v{AV}
    v_add_u32 v{AV}, s7, v{AV}
    """)
    for q in range(2):
        for r in (1, 2, 3): k(f"v_mov_b32 v{Q2[q]+r}, 0")
        for r in (2, 3): k(f"v_mov_b32 v{K2[q]+r}, 0")
        for i in range(16): k(f"v_mov_b32 v{OA[q]+i}, 0")
    for i in range(4):
        k(f"v_mov_b32 v{P+4+i}, 0\nv_mov_b32 v{V[1][1]+i}, 0\nv_mov_b32 v{CA+i}, 0")
    k(f"""
    s_cmp_lt_u32 s2, 144
    s_cselect_b32 s50, 1, 0
    s_cmp_ge_u32 s2, 72
    s_cselect_b32 s51, 1, 0
    s_cselect_b32 s8, s66, s64
    s_cselect_b32 s9, s67, s65
    s_mov_b32 s10, 5308416
    s_mov_b32 s11, 0x20000
    s_mul_i32 s77, s51, 72
    s_sub_u32 s77, s2, s77
    s_lshl_b32 s77, s77, 2
    s_add_u32 s77, s77, s4
    s_lshl_b32 s79, s77, 5
    s_lshl_b32 s78, s4, 10
    s_add_u32 s78, s78, {64*KV_TILE}
    v_lshrrev_b32 v{AD}, 1, v1
    s_movk_i32 s40, 9216
    v_mul_lo_u32 v{AD}, v{AD}, s40
    v_and_b32 v{AT_}, 1, v1
    v_lshl_add_u32 v{AD}, v{AT_}, 4, v{AD}
    v_lshrrev_b32 v{AC}, 4, v1
    v_bfe_u32 v{AT_}, v1, 2, 2
    v_lshl_add_u32 v{AT_}, v{AC}, 3, v{AT_}
    v_lshlrev_b32 v{AT_}, 5, v{AT_}
    v_and_b32 v{CF}, 3, v1
    v_lshl_add_u32 v{AT_}, v{CF}, 3, v{AT_}
    v_add_u32 v{AT_}, s78, v{AT_}
    v_and_b32 v{CF}, 15, v1
    v_mul_u32_u24 v{CF}, 1152, v{CF}
    v_lshl_add_u32 v{AC}, v{AC}, 4, v{CF}
    s_mov_b32 s41, 0
    s_lshl_b32 s76, s2, 2
    s_add_u32 s76, s76, s4
    s_mul_i32 s76, s76, 5184
    s_mov_b32 s70, s76
    s_mov_b32 s72, s64
    s_mov_b32 s73, s65
    s_mov_b32 s74, 5308416
    s_mov_b32 s75, 0x20000
    """)
    k.srd(44, 20, MODH_SZ, MODH)
    N0, N1, BP = X + 4, X + 5, X + 6
    k(f"""
    s_waitcnt vmcnt(4)
    v_cmp_eq_u32 vcc, 0, v4
    v_xor_b32 v{BP}, 32, v1
    v_lshlrev_b32 v{BP}, 2, v{BP}
    v_cndmask_b32 v{Q2[0]}, 0, v{Q2[0]}, vcc
    v_cndmask_b32 v{Q2[1]}, 0, v{Q2[1]}, vcc
    v_mov_b32 v{N0}, 0
    v_mov_b32 v{N1}, 0
    """)
    for q, n in ((0, N0), (1, N1)):
        for i in range(4): k(f"v_dot2c_f32_bf16 v{n}, v{Q1[q]+i}, v{Q1[q]+i}")
        k(f"v_dot2c_f32_bf16 v{n}, v{Q2[q]}, v{Q2[q]}")
    k(f"v_max_f32 v{X+2}, v{X+2}, v{X+3}")
    k.nop(3)
    k(f"ds_bpermute_b32 v{X+7}, v{BP}, v{N0}\nds_bpermute_b32 v{X+8}, v{BP}, v{N1}")
    for sh in (1, 2, 4, 8):
        for r in (X, X + 1, X + 2):
            k(f"v_max_f32_dpp v{r}, v{r}, v{r} row_ror:{sh} row_mask:0xf bank_mask:0xf")
    k.nop(1)
    for i, r in enumerate((X, X + 1, X + 2)):
        for j in range(2):
            k(f"v_readlane_b32 s{52+2*i+j}, v{r}, {16*j}")
    k("s_nop 3")
    for i in range(3):
        k(f"s_max_u32 s{52+2*i}, s{52+2*i}, s{53+2*i}")
    k(f"""
    v_mov_b32 v{X+9}, s52
    v_add_f32 v{X+9}, s54, v{X+9}
    s_waitcnt lgkmcnt(0)
    v_add_f32 v{N0}, v{N0}, v{X+7}
    v_add_f32 v{N1}, v{N1}, v{X+8}
    v_max_f32 v{N0}, v{N0}, v{N1}
    v_mul_f32 v{N0}, v{N0}, v{X+9}
    s_mov_b32 s40, {fhex(3600.0)}
    v_cmp_nge_f32 vcc, s40, v{N0}
    s_nop 3
    s_cmp_lg_u64 vcc, 0
    s_cselect_b32 s48, 1, 0
    s_cmp_gt_u32 s56, {fhex(2.0**40)}
    s_cselect_b32 s48, 1, s48
    s_waitcnt vmcnt(0)
    s_barrier
    """)
    k("L_k3_main:")
    ds = DSTrack(k)
    def rdK(rel):
        b = rel % 2
        ds.read(f"ds_read_b128 v[{K1[b]}:{K1[b]+3}], v{AK1} offset:{rel*KV_TILE}", K1[b], 4)
        ds.read(f"ds_read_b64 v[{K2[b]}:{K2[b]+1}], v{AK2} offset:{rel*KV_TILE}", K2[b], 2)
    def rdV(rel):
        b = rel % 2
        ds.read(f"ds_read_b128 v[{V[b][0]}:{V[b][0]+3}], v{AV} offset:{rel*KV_TILE}", V[b][0], 4)
        ds.read(f"ds_read_b128 v[{V[b][1]}:{V[b][1]+3}], v{AV} offset:{rel*KV_TILE+608}", V[b][1], 4)
    def mf_qk1(u):
        t, q = u // 2, u % 2
        k(f"v_mfma_f32_32x32x16_bf16 v[{Sb[q]}:{Sb[q]+15}], v[{K1[t%2]}:{K1[t%2]+3}], v[{Q1[q]}:{Q1[q]+3}], 0")
    def mf_qk2(u):
        t, q = u // 2, u % 2
        k(f"v_mfma_f32_32x32x16_bf16 v[{Sb[q]}:{Sb[q]+15}], v[{K2[t%2]}:{K2[t%2]+3}], v[{Q2[q]}:{Q2[q]+3}], v[{Sb[q]}:{Sb[q]+15}]")
    def mf_pv(u, h):
        t, q = u // 2, u % 2
        k(f"v_mfma_f32_32x32x16_bf16 v[{OA[q]}:{OA[q]+15}], v[{V[t%2][h]}:{V[t%2][h]+3}], v[{P+4*h}:{P+4*h+3}], v[{OA[q]}:{OA[q]+15}]")
    def ex(u, lo, hi):
        for i in range(lo, hi): k(f"v_exp_f32 v{Sb[u%2]+i}, v{Sb[u%2]+i}")
    def cv(u, lo, hi):
        for i in range(lo, hi): k(f"v_cvt_pk_bf16_f32 v{P+i}, v{Sb[u%2]+2*i}, v{Sb[u%2]+2*i+1}")
    def side_issue():
        k(f"""
        s_mov_b32 m0, s78
        s_nop 0
        buffer_load_dwordx4 v{AD}, s[8:11], s79 offen lds
        buffer_load_dwordx4 v[{CF}:{CF+3}], v{AC}, s[44:47], s41 offen
        s_add_u32 s79, s79, {32*9216}
        s_add_u32 s41, s41, 64
        """)
    k.stamp(0)
    def fill():
        rdK(0); rdV(0); rdK(1)
        ds.need((K1[0], 4), (K2[0], 2))
        mf_qk1(0); mf_qk2(0)
        k.nop(10)
    fill()
    head = [min(x) for x in ds.fifo]
    def body(kind):
        assert [min(x) for x in ds.fifo] == head, ([min(x) for x in ds.fifo], head)
        for u in range(4):
            t, q = u // 2, u % 2
            tn = (u + 1) // 2
            if PRIO: k(f"s_setprio {3-u}")
            ds.need((K1[tn % 2], 4))
            mf_qk1(u + 1)
            ex(u, 0, 4)
            mf_pv(u - 1, 1)
            if q == 0: rdV(t + 1)
            ex(u, 4, 8)
            if kind == "dma": dma1()
            if kind == "warm":
                k(f"buffer_load_dwordx4 v[{X+4*u}:{X+3+4*u}], v7, s[72:75], s76 offen offset:{1024*(u%2)}")
                if q == 1:
                    k(f"""
                    s_add_u32 s76, s76, 2048
                    s_sub_u32 s71, s71, 1
                    s_cmp_eq_u32 s71, 7
                    s_cselect_b32 s72, s66, s72
                    s_cselect_b32 s73, s67, s73
                    s_cselect_b32 s76, s70, s76
                    s_cmp_eq_u32 s71, 4
                    s_cselect_b32 s72, s68, s72
                    s_cselect_b32 s73, s69, s73
                    s_cselect_b32 s76, s70, s76
                    """)
            if kind == "side" and q == 0:
                k(f"""
                s_waitcnt vmcnt(0)
                ds_read_b64_tr_b16 v[{WF}:{WF+1}], v{AT_}
                ds_read_b64_tr_b16 v[{WF+2}:{WF+3}], v{AT_} offset:128
                """)
            ds.need((K2[tn % 2], 2))
            ds.need((V[t % 2][0], 8))
            cv(u, 0, 4)
            mf_qk2(u + 1)
            if q == 0: rdK(t + 2)
            ex(u, 8, 12)
            mf_pv(u, 0)
            if kind == "side" and q == 0:
                k("s_waitcnt lgkmcnt(0)")
                k(f"v_mfma_f32_16x16x32_bf16 v[{CA}:{CA+3}], v[{WF}:{WF+3}], v[{CF}:{CF+3}], v[{CA}:{CA+3}]")
                side_issue()
            ex(u, 12, 16)
            if u == 3:
                for A_ in (AK1, AK2, AV):
                    k(f"v_add_u32 v{A_}, {2*KV_TILE}, v{A_}")
                k("s_sub_u32 s40, s40, 1\ns_cmp_lg_u32 s40, 0")
            elif not PRIO:
                k("s_nop 0")
            cv(u, 4, 8)
        if PRIO: k("s_barrier")
    def loop(kind, n, name):
        if n: k(f"s_mov_b32 s40, {n}")
        k(f".p2align 6\n{name}:")
        body(kind)
        k(f"s_cbranch_scc1 {name}")
    loop("dma", 2, "L_k3_l1")
    k("s_waitcnt vmcnt(4)\ns_barrier")
    loop("dma", 2, "L_k3_l2")
    k("s_mov_b32 s40, 1\ns_mov_b32 s43, 2\ns_branch L_k3_plain")
    k("L_k3_b2:\ns_waitcnt vmcnt(0)\ns_barrier")
    k.stamp(2)
    k("s_mov_b32 s43, 0\ns_cmp_ge_u32 s3, 4\ns_cbranch_scc1 L_k3_w")
    k("s_mov_b32 s40, 11")
    if not NOSIDE:
        k("s_cmp_eq_u32 s50, 0\ns_cbranch_scc1 L_k3_plain\ns_mov_b32 s40, 1\ns_mov_b32 s43, 1")
    k("s_branch L_k3_plain")
    k("L_k3_w:")
    if WARM:
        k("s_mov_b32 s71, 10")
        loop("warm", 5, "L_k3_lw")
        k("s_mov_b32 s40, 6")
    else:
        k("s_mov_b32 s40, 11")
    k("L_k3_plain:")
    loop("plain", 0, "L_k3_lp")
    k("s_cmp_eq_u32 s43, 0\ns_cbranch_scc1 L_k3_done")
    k("s_cmp_eq_u32 s43, 2\ns_cbranch_scc1 L_k3_b2")
    k("s_cmp_eq_u32 s43, 3\ns_cbranch_scc1 L_k3_ls1")
    side_issue()
    k("s_mov_b32 s43, 3\ns_mov_b32 s40, 1\ns_branch L_k3_plain\nL_k3_ls1:")
    loop("side", 9, "L_k3_ls")
    k("L_k3_done:")
    k("s_waitcnt lgkmcnt(0)")
    mf_pv(3, 1)
    k("s_cmp_eq_u32 s48, 0\ns_cbranch_scc1 L_k3_fin\ns_mov_b32 s48, 0")
    k.nop(12)
    k(f"""
    v_mov_b32 v{X}, 0xff7fffff
    v_mov_b32 v{X+1}, 0xff7fffff
    v_mov_b32 v{X+2}, v7
    v_subrev_u32 v{X+3}, s7, v{AK2}
    v_subrev_u32 v{X+3}, {HALF}, v{X+3}
    s_mov_b32 s40, 0
    L_k3_pre:
    ds_read_b128 v[{K1[0]}:{K1[0]+3}], v{X+2}
    ds_read_b64 v[{K2[0]}:{K2[0]+1}], v{X+3}
    v_add_u32 v{X+2}, {KV_TILE}, v{X+2}
    v_add_u32 v{X+3}, {KV_TILE}, v{X+3}
    s_waitcnt lgkmcnt(0)
    """)
    for q in range(2):
        k(f"v_mfma_f32_32x32x16_bf16 v[{Sb[q]}:{Sb[q]+15}], v[{K1[0]}:{K1[0]+3}], v[{Q1[q]}:{Q1[q]+3}], 0")
        k(f"v_mfma_f32_32x32x16_bf16 v[{Sb[q]}:{Sb[q]+15}], v[{K2[0]}:{K2[0]+3}], v[{Q2[q]}:{Q2[q]+3}], v[{Sb[q]}:{Sb[q]+15}]")
    k("s_nop 12")
    for q in range(2):
        for i in range(0, 16, 2):
            k(f"v_max3_f32 v{X+q}, v{Sb[q]+i}, v{Sb[q]+i+1}, v{X+q}")
    k(f"""
    s_add_u32 s40, s40, 1
    s_cmp_lt_u32 s40, 64
    s_cbranch_scc1 L_k3_pre
    v_xor_b32 v{BP}, 32, v1
    v_lshlrev_b32 v{BP}, 2, v{BP}
    v_cmp_eq_u32 vcc, 0, v4
    ds_bpermute_b32 v{X+2}, v{BP}, v{X}
    ds_bpermute_b32 v{X+3}, v{BP}, v{X+1}
    s_waitcnt lgkmcnt(0)
    """)
    for q in range(2):
        k(f"""
        v_max_f32 v{X+q}, v{X+q}, v{X+2+q}
        v_sub_f32 v{X+q}, 0, v{X+q}
        v_cvt_pk_bf16_f32 v{X+4}, v{X+q}, v{X+q}
        v_lshlrev_b32 v{X+4}, 16, v{X+4}
        v_sub_f32 v{X+5}, v{X+q}, v{X+4}
        v_cvt_pk_bf16_f32 v{X+4}, v{X+4}, v{X+5}
        v_cndmask_b32 v{Q2[q]+1}, 0, v{X+4}, vcc
        """)
    for q in range(2):
        for i in range(16): k(f"v_mov_b32 v{OA[q]+i}, 0")
    for i in range(4):
        k(f"v_mov_b32 v{P+4+i}, 0\nv_mov_b32 v{V[1][1]+i}, 0")
    for A_ in (AK1, AK2, AV):
        k(f"v_subrev_u32 v{A_}, {HALF}, v{A_}")
    ds.fifo = []
    fill()
    k("s_mov_b32 s43, 0\ns_mov_b32 s40, 16\ns_branch L_k3_plain")
    k("L_k3_fin:")
    k.nop(12)
    k.stamp(1)
    k(f"""
    s_setprio 0
    s_barrier
    s_lshl_b32 s40, s3, 12
    v_add_u32 v{X}, s40, v7
    s_xor_b32 s40, s3, 4
    s_lshl_b32 s40, s40, 12
    v_add_u32 v{X+1}, s40, v7
    s_cmp_eq_u32 s5, 0
    s_cbranch_scc1 L_k3_h0
    """)
    for i in range(12):
        k(f"v_swap_b32 v{OA[0]+i}, v{OA[1]+i}")
    k("s_mov_b32 s22, s6\nL_k3_h0:")
    for i in range(3):
        k(f"ds_write_b128 v{X}, v[{OA[1]+4*i}:{OA[1]+4*i+3}] offset:{1024*i}")
    k("s_waitcnt lgkmcnt(0)\ns_barrier")
    for i in range(3):
        k(f"ds_read_b128 v[{OA[1]+4*i}:{OA[1]+4*i+3}], v{X+1} offset:{1024*i}")
    k.srd(12, 20, CS_SZ, CS)
    k(f"""
    v_lshlrev_b32 v{X+2}, 2, v3
    v_mul_u32_u24 v5, 36, v3
    v_lshl_add_u32 v5, v4, 3, v5
    s_waitcnt lgkmcnt(0)
    """)
    O_ = OA[0]
    for i in range(11):
        k(f"v_add_f32 v{O_+i}, v{O_+i}, v{OA[1]+i}")
    k(f"""
    ds_bpermute_b32 v{X+3}, v{X+2}, v{O_+10}
    s_waitcnt lgkmcnt(0)
    v_rcp_f32 v{X+3}, v{X+3}
    s_nop 0
    """)
    for i in range(10):
        k(f"v_mul_f32 v{O_+i}, v{O_+i}, v{X+3}")
    for i in range(5):
        k(f"v_cvt_pk_bf16_f32 v{P+i}, v{O_+2*i}, v{O_+2*i+1}")
    k(f"""
    buffer_store_dwordx2 v[{P}:{P+1}], v5, s[36:39], s22 offen
    buffer_store_dwordx2 v[{P+2}:{P+3}], v5, s[36:39], s22 offen offset:16
    v_cmp_eq_u32 vcc, 0, v4
    s_and_saveexec_b64 s[42:43], vcc
    buffer_store_dword v{P+4}, v5, s[36:39], s22 offen offset:32
    s_mov_b64 exec, s[42:43]
    s_cmp_eq_u32 s50, 0
    s_cbranch_scc1 L_k3_end
    s_cmp_ge_u32 s3, 4
    s_cbranch_scc1 L_k3_end
    s_lshl_b32 s40, s51, 1
    s_mul_i32 s40, s40, {F*4}
    s_lshl_b32 s41, s77, 6
    s_add_u32 s40, s40, s41
    v_and_b32 v{WF}, 15, v1
    v_lshrrev_b32 v{WF+1}, 4, v1
    s_movk_i32 s41, {F*4}
    v_mul_lo_u32 v{WF+2}, v{WF}, s41
    v_lshl_add_u32 v{WF+2}, v{WF+1}, 4, v{WF+2}
    v_cmp_gt_u32 vcc, 2, v{WF}
    s_and_saveexec_b64 s[42:43], vcc
    buffer_store_dwordx4 v[{CA}:{CA+3}], v{WF+2}, s[12:15], s40 offen
    L_k3_end:
    s_endpgm
    """)
    return k
```

```python
from fw import *
from layout import *
from k2 import small_gemm, gemm_addr

def gen_k4():
    k = Kern("wo_kernel", 256, 576, 36864, 128)
    TB, ACC, XR, GA, CB, AX, AP = 80, 104, 112, 116, 120, 124, 125
    k("""
    s_load_dwordx2 s[4:5], s[0:1], 0
    s_load_dwordx2 s[20:21], s[0:1], 104
    v_and_b32 v1, 63, v0
    v_lshrrev_b32 v2, 6, v0
    s_nop 0
    v_readfirstlane_b32 s3, v2
    s_cmp_ge_u32 s2, 256
    s_cbranch_scc1 L_k4_end
    s_movk_i32 s22, 911
    v_mul_lo_u32 v2, v0, s22
    v_lshrrev_b32 v2, 16, v2
    v_mul_u32_u24 v3, 72, v2
    v_sub_u32 v3, v0, v3
    s_and_b32 s22, s2, 7
    s_lshl_b32 s22, s22, 3
    s_lshr_b32 s23, s2, 3
    s_and_b32 s23, s23, 7
    s_add_u32 s22, s22, s23
    s_lshr_b32 s49, s2, 6
    s_mul_i32 s23, s49, 9
    s_add_u32 s23, s23, s3
    s_waitcnt lgkmcnt(0)
    """)
    k.stamp(3)
    k.srd(24, 4, S * 1152)
    k.srd(28, 20, O_SZ, O)
    k.srd(32, 20, MOD_SZ, MOD)
    k.srd(36, 20, WO_SZ, WOP)
    k("""
    v_mul_u32_u24 v4, 1152, v2
    v_lshl_add_u32 v4, v3, 4, v4
    s_mul_i32 s40, s22, 36864
    s_mov_b32 s41, s40
    """)
    for p in range(4):
        k(f"buffer_load_dwordx4 v[{TB+4*p}:{TB+3+4*p}], v4, s[28:31], s40 offen")
        if p < 3: k("s_add_u32 s40, s40, 9216")
    k(f"""
    v_and_b32 v5, 15, v1
    v_lshrrev_b32 v6, 4, v1
    v_mul_u32_u24 v{AX}, 1152, v5
    v_lshl_add_u32 v{AX}, v6, 3, v{AX}
    s_lshl_b32 s42, s23, 5
    s_add_u32 s41, s41, s42
    s_add_u32 s42, s41, 18432
    v_lshlrev_b32 v{AP}, 4, v6
    s_lshl_b32 s43, s23, 6
    s_add_u32 s43, s43, 4608
    s_add_u32 s44, s43, 4608
    buffer_load_dwordx2 v[{XR}:{XR+1}], v{AX}, s[24:27], s41 offen
    buffer_load_dwordx2 v[{XR+2}:{XR+3}], v{AX}, s[24:27], s42 offen
    buffer_load_dwordx4 v[{GA}:{GA+3}], v{AP}, s[32:35], s43 offen
    buffer_load_dwordx4 v[{CB}:{CB+3}], v{AP}, s[32:35], s44 offen
    v_lshlrev_b32 v7, 4, v1
    s_mul_i32 s40, s23, 18432
    """)
    k("""
    v_xor_b32 v5, v3, v2
    v_mul_u32_u24 v4, 1152, v2
    v_lshl_add_u32 v4, v5, 4, v4
    """)
    def wl(a, b):
        for ks in range(a, b):
            k(f"buffer_load_dwordx4 v[{8+4*ks}:{11+4*ks}], v7, s[36:39], s40 offen offset:{(ks&3)*1024}")
            if ks & 3 == 3: k("s_add_u32 s40, s40, 4096")
    NE = 18
    wl(0, NE)
    for p in range(4):
        k(f"s_waitcnt vmcnt({NE+4+3-p})")
        k(f"ds_write_b128 v4, v[{TB+4*p}:{TB+3+4*p}] offset:{9216*p}")
    k.stamp(0)
    k("s_waitcnt lgkmcnt(0)\ns_barrier")
    wl(NE, 18)
    gemm_addr(k)
    k.stamp(1)
    small_gemm(k, 8, TB, 6, ACC, 5, 6, False)
    k.stamp(2)
    k.srd(24, 20, X1_SZ, X1)
    k.srd(28, 20, X1P_SZ, X1P)
    k.srd(32, 20, ST2_SZ, ST2)
    k(f"""
    s_and_b32 s45, s23, 1
    s_lshl_b32 s45, s45, 1
    v_lshrrev_b32 v{AP}, 1, v4
    v_add_u32 v{AP}, s45, v{AP}
    v_lshrrev_b32 v126, 2, v3
    v_sub_u32 v126, 4, v126
    v_xor_b32 v{AP}, v{AP}, v126
    v_and_b32 v{AP}, 3, v{AP}
    v_lshlrev_b32 v{AP}, 4, v{AP}
    v_lshl_add_u32 v{AP}, v3, 6, v{AP}
    v_and_b32 v126, 1, v4
    v_lshl_add_u32 v{AP}, v126, 3, v{AP}
    s_lshr_b32 s45, s22, 3
    s_lshr_b32 s46, s23, 1
    s_lshl_b32 s46, s46, 3
    s_add_u32 s45, s45, s46
    s_lshl_b32 s45, s45, 14
    s_and_b32 s46, s22, 7
    s_lshl_b32 s46, s46, 11
    s_add_u32 s45, s45, s46
    """)
    for tt in range(2):
        xs = XR + 2 * tt
        a = ACC + 4 * tt
        k(f"""
        v_lshlrev_b32 v80, 16, v{xs}
        v_and_b32 v81, 0xffff0000, v{xs}
        v_lshlrev_b32 v82, 16, v{xs+1}
        v_and_b32 v83, 0xffff0000, v{xs+1}
        """)
        for i in range(4):
            k(f"v_fmac_f32 v{80+i}, v{GA+i}, v{a+i}")
        o = 84 + 8 * tt
        k(f"""
        v_cvt_pk_bf16_f32 v{o}, v80, v81
        v_cvt_pk_bf16_f32 v{o+1}, v82, v83
        v_lshlrev_b32 v80, 16, v{o}
        v_and_b32 v81, 0xffff0000, v{o}
        v_lshlrev_b32 v82, 16, v{o+1}
        v_and_b32 v83, 0xffff0000, v{o+1}
        v_add_f32 v{o+4}, v80, v81
        v_add_f32 v{o+5}, v82, v83
        v_add_f32 v{o+4}, v{o+4}, v{o+5}
        v_mul_f32 v{o+5}, v80, v80
        v_fmac_f32 v{o+5}, v81, v81
        v_fmac_f32 v{o+5}, v82, v82
        v_fmac_f32 v{o+5}, v83, v83
        """)
        for i in range(4):
            k(f"v_mul_f32 v{80+i}, v{80+i}, v{CB+i}")
        k(f"""
        v_cvt_pk_bf16_f32 v{o+2}, v80, v81
        v_cvt_pk_bf16_f32 v{o+3}, v82, v83
        buffer_store_dwordx2 v[{o}:{o+1}], v{AX}, s[24:27], s{41+tt} offen
        buffer_store_dwordx2 v[{o+2}:{o+3}], v{AP}, s[28:31], s45 offen offset:{1024*tt}
        """)
    k("""
    s_barrier
    s_lshl_b32 s40, s3, 2
    v_add_u32 v7, s40, v4
    v_lshlrev_b32 v7, 8, v7
    v_lshl_add_u32 v7, v3, 3, v7
    ds_write_b64 v7, v[88:89]
    ds_write_b64 v7, v[96:97] offset:128
    s_waitcnt lgkmcnt(0)
    s_barrier
    s_cmp_lg_u32 s3, 0
    s_cbranch_scc1 L_k4_end
    v_lshlrev_b32 v7, 2, v1
    """)
    for p in range(36):
        k(f"ds_read_b32 v{8+p}, v7 offset:{256*p}")
        if p % 12 == 11: k("s_waitcnt lgkmcnt(0)")
    for a in range(4):
        for i in range(a + 4, 36, 4):
            k(f"v_add_f32 v{8+a}, v{8+a}, v{8+i}")
    k("""
    v_add_f32 v8, v8, v9
    v_add_f32 v10, v10, v11
    v_add_f32 v8, v8, v10
    v_lshrrev_b32 v5, 1, v1
    v_and_b32 v6, 1, v1
    v_lshlrev_b32 v5, 5, v5
    v_lshl_add_u32 v5, v6, 2, v5
    s_lshl_b32 s40, s22, 10
    s_lshl_b32 s41, s49, 3
    s_add_u32 s40, s40, s41
    buffer_store_dword v8, v5, s[32:35], s40 offen
    L_k4_end:
    s_endpgm
    """)
    return k
```

```python
import os
from fw import *
from layout import *
from k1 import bf16r, LOG2E

def gen_k5():
    NW = 12
    STG = 36864
    NST = 18
    AUX = 4 * STG
    k = Kern("ffn1_kernel", 256, NW * 64, 4 * STG + 12288, 168)
    DM = [0, 1, 2]
    AT = [3, 4]; AW = [5, 6]; LN16 = 7
    C1 = 8; C2 = 12
    NMU, SD = 8, 12
    W = 16; CSR = 32; T = [40, 56]; ACC = 72
    ACS = 7; STA = CSR
    def acc(wf, tf): return ACC + 4 * (wf * 4 + tf)
    RA, RB = [int(x) for x in os.environ.get("K5_ROT", "0,0").split(",")]
    k("""
    s_load_dwordx4 s[8:11], s[0:1], 48
    s_load_dwordx2 s[20:21], s[0:1], 104
    v_and_b32 v1, 63, v0
    v_lshrrev_b32 v2, 6, v0
    v_lshlrev_b32 v7, 4, v1
    v_readfirstlane_b32 s3, v2
    s_cmp_ge_u32 s2, 256
    s_cbranch_scc1 L_k5_end
    s_and_b32 s22, s2, 7
    s_lshl_b32 s22, s22, 2
    s_lshr_b32 s23, s2, 3
    s_and_b32 s24, s23, 3
    s_add_u32 s22, s22, s24
    s_lshr_b32 s23, s23, 2
    s_and_b32 s24, s3, 3
    s_lshr_b32 s25, s3, 2
    s_lshl_b32 s26, s23, 8
    s_mul_i32 s27, s22, 144
    v_and_b32 v160, 15, v1
    v_lshrrev_b32 v161, 4, v1
    s_waitcnt lgkmcnt(0)
    """)
    k(f"""
    s_mov_b32 s28, {ST2}
    s_mov_b32 s30, {ST2_SZ}
    s_cmp_ge_u32 s3, 8
    s_cselect_b32 s28, {CS}, s28
    s_cselect_b32 s30, {CS_SZ}, s30
    s_add_u32 s28, s20, s28
    s_addc_u32 s29, s21, 0
    s_mov_b32 s31, 0x20000
    s_lshl_b32 s40, s26, 5
    s_lshl_b32 s41, s3, 10
    s_add_u32 s40, s40, s41
    s_sub_u32 s42, s3, 8
    s_mul_i32 s42, s42, {F*4}
    s_lshl_b32 s43, s27, 2
    s_add_u32 s42, s42, s43
    s_cmp_ge_u32 s3, 8
    s_cselect_b32 s40, s42, s40
    s_add_u32 m0, s41, {AUX}
    s_nop 0
    buffer_load_dwordx4 v7, s[28:31], s40 offen lds
    """)
    for q in range(3):
        sr = 44 + 4 * q
        la, lb = k.label("dmaw"), k.label("dmad")
        dst = (166, 159, 2)[q]
        k(f"""
        s_mul_i32 s66, s3, 3
        s_add_u32 s66, s66, {q}
        s_lshl_b32 s{62+q}, s66, 10
        s_mov_b32 s{sr+3}, 0x20000
        s_cmp_ge_u32 s66, 16
        s_cbranch_scc1 {la}
        s_add_u32 s{sr}, s20, {X1P}
        s_addc_u32 s{sr+1}, s21, 0
        s_mov_b32 s{sr+2}, {X1P_SZ}
        s_lshl_b32 s{56+q}, s23, 14
        s_add_u32 s{56+q}, s{56+q}, s{62+q}
        s_mov_b32 s{59+q}, {8*16384}
        v_lshlrev_b32 v{dst}, 4, v1
        s_branch {lb}
        {la}:
        s_cmp_ge_u32 s66, 26
        s_cselect_b32 s{sr}, s10, s8
        s_cselect_b32 s{sr+1}, s11, s9
        s_cselect_b32 s67, 26, 16
        s_mov_b32 s{sr+2}, 5308416
        s_lshl_b32 s{56+q}, s27, 1
        s_mov_b32 s{59+q}, {32*9216}
        s_sub_u32 s67, s66, s67
        s_lshl_b32 s67, s67, 6
        v_add_u32 v164, s67, v1
        v_mul_u32_u24 v165, 863, v164
        v_lshrrev_b32 v165, 17, v165
        v_mul_u32_u24 v167, 152, v165
        v_sub_u32 v164, v164, v167
        v_min_u32 v164, 143, v164
        v_min_u32 v165, 3, v165
        v_mul_u32_u24 v167, 3641, v164
        v_lshrrev_b32 v167, 16, v167
        v_lshl_add_u32 v165, v165, 3, v167
        v_mul_u32_u24 v167, 18, v167
        v_sub_u32 v164, v164, v167
        v_mul_u32_u24 v165, 9216, v165
        v_lshl_add_u32 v{dst}, v164, 4, v165
        {lb}:
        """)
    k(f"""
    s_and_b32 s68, s22, 3
    s_mul_i32 s68, s68, {RB}
    s_mul_i32 s69, s23, {RA}
    s_add_u32 s68, s68, s69
    s_cmp_ge_u32 s68, 18
    s_cselect_b32 s69, 18, 0
    s_sub_u32 s68, s68, s69
    v_bfe_u32 v158, v1, 2, 2
    v_and_b32 v157, 3, v1
    v_mov_b32 v0, v166
    v_mov_b32 v1, v159
    """)
    def dma1(st, q):
        buf = st % 4
        k(f"s_add_u32 m0, s{62+q}, {buf*STG}")
        k("s_nop 0")
        k(f"buffer_load_dwordx4 v{DM[q]}, s[{44+4*q}:{47+4*q}], s{56+q} offen lds")
        k(f"s_add_u32 s{56+q}, s{56+q}, s{59+q}")
    def dma(st):
        for q in range(3): dma1(st, q)
    dma(0); dma(1); dma(2)
    k.stamp(3)
    k(f"""
    v_lshrrev_b32 v164, 2, v160
    v_sub_u32 v164, 4, v164
    v_xor_b32 v164, v164, v161
    v_and_b32 v164, 3, v164
    s_lshl_b32 s66, s24, 12
    v_lshlrev_b32 v{AT[0]}, 6, v160
    v_lshl_add_u32 v{AT[0]}, v164, 4, v{AT[0]}
    v_add_u32 v{AT[0]}, s66, v{AT[0]}
    v_add_u32 v{AT[1]}, {2*STG}, v{AT[0]}
    v_lshl_add_u32 v164, v161, 3, v158
    v_mul_u32_u24 v164, 288, v164
    v_lshl_add_u32 v164, v161, 7, v164
    v_lshl_add_u32 v164, v157, 3, v164
    s_mul_i32 s66, s25, 96
    v_add_u32 v{AW[0]}, s66, v164
    v_add_u32 v{AW[1]}, {2*STG}, v{AW[0]}
    s_lshl_b32 s66, s24, 11
    s_add_u32 s66, s66, {AUX}
    v_lshlrev_b32 v{STA}, 5, v160
    v_add_u32 v{STA}, s66, v{STA}
    s_mul_i32 s66, s25, 192
    s_add_u32 s66, s66, {AUX + 8192}
    v_lshlrev_b32 v{ACS}, 4, v161
    v_add_u32 v{ACS}, s66, v{ACS}
    """)
    ds = DSTrack(k)
    def rdT(st):
        buf = st % 4
        a = AT[buf >> 1]; o = (buf & 1) * STG
        for tf in range(4):
            b = T[st % 2] + 4 * tf
            ds.read(f"ds_read_b128 v[{b}:{b+3}], v{a} offset:{o + 1024*tf}", b, 4)
    def wreg(st, wf): return W + 4 * ((st * 6 + wf) % 4)
    def rdW(st, wf):
        buf = st % 4
        a = AW[buf >> 1]; o = (buf & 1) * STG
        ft, mat = wf // 2, wf % 2
        for j in range(2):
            b = wreg(st, wf) + 2 * j
            ds.read(f"ds_read_b64_tr_b16 v[{b}:{b+1}], v{a} offset:{o + 16384 + mat*10240 + j*1152 + ft*32}", b, 2)
    k("s_waitcnt vmcnt(6)\ns_barrier")
    k.stamp(0)
    rdT(0)
    for wf in range(4): rdW(0, wf)
    SB = acc(4, 0)
    for tf in range(4):
        ds.read(f"ds_read_b128 v[{SB+8*tf}:{SB+8*tf+3}], v{STA} offset:{512*tf}", SB + 8 * tf, 4)
        ds.read(f"ds_read_b128 v[{SB+8*tf+4}:{SB+8*tf+7}], v{STA} offset:{512*tf+16}", SB + 8 * tf + 4, 4)
    def stats_code(tf, b):
        out = f"""
        v_add_f32 v{b}, v{b}, v{b+2}
        v_add_f32 v{b+4}, v{b+4}, v{b+6}
        v_add_f32 v{b+1}, v{b+1}, v{b+3}
        v_add_f32 v{b+5}, v{b+5}, v{b+7}
        v_add_f32 v{b}, v{b}, v{b+4}
        v_add_f32 v{b+1}, v{b+1}, v{b+5}
        v_mul_f32 v{b}, {fhex(-1/576)}, v{b}
        v_mul_f32 v{b+1}, {fhex(1/576)}, v{b+1}
        v_fma_f32 v{b+1}, -v{b}, v{b}, v{b+1}
        v_max_f32 v{b+1}, 0, v{b+1}
        v_cvt_pk_bf16_f32 v{NMU+tf}, v{b}, v{b}
        v_cvt_pk_bf16_f32 v{b+1}, v{b+1}, v{b+1}
        v_lshlrev_b32 v{NMU+tf}, 16, v{NMU+tf}
        v_lshlrev_b32 v{b+1}, 16, v{b+1}
        v_add_f32 v{b+1}, {fhex(1e-5)}, v{b+1}
        v_cvt_pk_bf16_f32 v{b+1}, v{b+1}, v{b+1}
        v_lshlrev_b32 v{b+1}, 16, v{b+1}
        v_sqrt_f32 v{b+1}, v{b+1}
        s_nop 0
        v_cvt_pk_bf16_f32 v{SD+tf}, v{b+1}, v{b+1}
        v_lshlrev_b32 v{SD+tf}, 16, v{SD+tf}"""
        return [x.strip() for x in out.strip().split("\n")]
    for st in range(NST):
        if st + 1 < NST:
            outstanding = 3 if st + 2 < NST else 0
            k(f"s_waitcnt vmcnt({outstanding})")
            k("s_barrier")
        nxt = st + 1 < NST
        fill = {g: [] for g in range(6)}
        pre = {g: None for g in range(6)}
        if st == 0:
            pass
        cw = st - 2 if 2 <= st < 8 else None
        if cw is not None:
            fm = []
            for tf in range(4):
                for r in range(4):
                    d = acc(cw, tf) + r
                    fm.append(f"v_fmac_f32 v{d}, v{CSR+4+r}, v{SD+tf}")
                    fm.append(f"v_fmac_f32 v{d}, v{CSR+r}, v{NMU+tf}")
            gs = [(cw + 2) % 6, (cw + 3) % 6, (cw + 4) % 6]
            for i, g in enumerate(gs): fill[g] = fm[i * 11:(i + 1) * 11] if i < 2 else fm[22:]
            for g in gs: pre[g] = (CSR, 8)
            mat, ft = cw % 2, cw // 2
            ds.read(f"ds_read_b128 v[{CSR}:{CSR+3}], v{ACS} offset:{(2*mat)*1024 + 64*ft}", CSR, 4)
            ds.read(f"ds_read_b128 v[{CSR+4}:{CSR+7}], v{ACS} offset:{(2*mat+1)*1024 + 64*ft}", CSR + 4, 4)
        for wf in range(6):
            if st == 0 and wf < 4:
                fill[wf] = stats_code(wf, SB + 8 * wf)
                pre[wf] = (SB + 8 * wf, 8)
            ds.need((wreg(st, wf), 4), (T[st % 2], 16))
            if pre[wf]: ds.need(pre[wf])
            f = list(fill[wf])
            per = (len(f) + 3) // 4
            for tf in range(4):
                a = acc(wf, tf)
                t = T[st % 2] + 4 * tf
                c = "0" if st == 0 else f"v[{a}:{a+3}]"
                w = wreg(st, wf)
                k(f"v_mfma_f32_16x16x32_bf16 v[{a}:{a+3}], v[{w}:{w+3}], v[{t}:{t+3}], {c}")
                if nxt and wf == 1 and tf == 0: rdT(st + 1)
                for x in f[tf * per:(tf + 1) * per]: k(x)
            g2 = st * 6 + wf + 4
            if g2 < NST * 6: rdW(g2 // 6, g2 % 6)
            if st + 3 < NST and wf in (0, 2, 4): dma1(st + 3, wf // 2)
    k.nop(8)
    k.stamp(1)
    for tf in range(4):
        k(f"v_rcp_f32 v{SD+tf}, v{SD+tf}")
    k("s_nop 0")
    for tf in range(4):
        k(f"v_mul_f32 v{C1+tf}, {fhex(-LOG2E)}, v{SD+tf}")
        k(f"v_mul_f32 v{C2+tf}, v{SD+tf}, v{SD+tf}")
    k.srd(28, 20, ACT_SZ, ACT)
    k(f"""
    s_lshl_b32 s41, s23, 3
    s_lshl_b32 s42, s24, 1
    s_add_u32 s41, s41, s42
    s_lshl_b32 s41, s41, 12
    s_mul_i32 s42, s22, 9
    s_mul_i32 s43, s25, 3
    s_add_u32 s42, s42, s43
    """)
    k("v_mbcnt_lo_u32_b32 v7, -1, 0\nv_mbcnt_hi_u32_b32 v7, -1, v7\nv_lshlrev_b32 v7, 4, v7")
    E = 16
    ST = os.environ.get('K5_ST', ' sc1')
    for ft in range(3):
        k(f"""
        s_add_u32 s43, s42, {ft}
        s_lshr_b32 s44, s43, 2
        s_lshl_b32 s44, s44, 18
        s_and_b32 s43, s43, 3
        s_lshl_b32 s43, s43, 10
        s_add_u32 s44, s44, s43
        s_add_u32 s44, s44, s41
        s_add_u32 s45, s44, 4096
        """)
        for pr in range(2):
            o = E + 32 + 4 * ((ft * 2 + pr) % 4)
            for half in range(2):
                tf = 2 * pr + half
                a, b = acc(2 * ft, tf), acc(2 * ft + 1, tf)
                e = E + 8 * half
                for r in range(4): k(f"v_mul_f32 v{e+r}, v{C1+tf}, v{a+r}")
                for r in range(4): k(f"v_exp_f32 v{e+r}, v{e+r}")
                for r in range(4): k(f"v_mul_f32 v{e+4+r}, v{a+r}, v{b+r}")
                for r in range(4): k(f"v_add_f32 v{e+r}, 1.0, v{e+r}")
                for r in range(4): k(f"v_rcp_f32 v{e+r}, v{e+r}")
                for r in range(4): k(f"v_mul_f32 v{e+4+r}, v{C2+tf}, v{e+4+r}")
                for r in range(4): k(f"v_mul_f32 v{e+4+r}, v{e+4+r}, v{e+r}")
                k(f"v_cvt_pk_bf16_f32 v{o+2*half}, v{e+4}, v{e+5}")
                k(f"v_cvt_pk_bf16_f32 v{o+2*half+1}, v{e+6}, v{e+7}")
            k.nop(2)
            k(f"v_permlane16_swap_b32 v{o}, v{o+2}")
            k(f"v_permlane16_swap_b32 v{o+1}, v{o+3}")
            k(f"buffer_store_dwordx4 v[{o}:{o+3}], v{LN16}, s[28:31], s{44+pr} offen{ST}")
    k.stamp(2)
    k("L_k5_end:\ns_endpgm")
    return k
```

```python
import os
from fw import *
from layout import *

def gen_k6():
    NW = 8
    STG = 36864
    NST = 18
    PF = int(os.environ.get("K6_PF", "0"))
    k = Kern("ffn2_kernel", 256, (NW + 4) * 64, 4 * STG, 160)
    DM = [0, 1, 2, 3, 4]
    AT = [5, 6]; AW = [7, 8]
    W = 12; T = [48, 56]; ACC = 64
    def acc(wf, tf): return ACC + 4 * (wf * 2 + tf)
    TMP = 136
    k(f"""
    s_load_dwordx2 s[8:9], s[0:1], 64
    s_load_dwordx2 s[20:21], s[0:1], 104
    v_and_b32 v{TMP}, 63, v0
    v_lshrrev_b32 v2, 6, v0
    s_nop 0
    v_readfirstlane_b32 s3, v2
    s_cmp_ge_u32 s2, 256
    s_cbranch_scc1 L_k6_end
    s_and_b32 s22, s2, 7
    s_lshr_b32 s23, s2, 3
    s_lshr_b32 s24, s22, 1
    s_and_b32 s22, s22, 1
    s_lshl_b32 s22, s22, 3
    s_and_b32 s25, s23, 7
    s_add_u32 s22, s22, s25
    s_lshr_b32 s23, s23, 3
    s_and_b32 s25, s3, 3
    s_lshr_b32 s26, s3, 2
    v_and_b32 v{TMP+1}, 15, v{TMP}
    v_lshrrev_b32 v{TMP+2}, 4, v{TMP}
    s_waitcnt lgkmcnt(0)
    """)
    L, Tt, G = TMP, TMP + 1, TMP + 2
    X, Y, Z = TMP + 3, TMP + 4, TMP + 5
    def wslot(dst, base_sreg, maxblk):
        k(f"""
        v_add_u32 v{X}, {base_sreg}, v{L}
        v_mul_u32_u24 v{Y}, 863, v{X}
        v_lshrrev_b32 v{Y}, 17, v{Y}
        v_mul_u32_u24 v{Z}, 152, v{Y}
        v_sub_u32 v{X}, v{X}, v{Z}
        v_min_u32 v{X}, 143, v{X}
        v_min_u32 v{Y}, {maxblk}, v{Y}
        v_mul_u32_u24 v{Z}, 3641, v{X}
        v_lshrrev_b32 v{Z}, 16, v{Z}
        v_lshl_add_u32 v{Y}, v{Y}, 3, v{Z}
        v_mul_u32_u24 v{Z}, 18, v{Z}
        v_sub_u32 v{X}, v{X}, v{Z}
        v_mul_u32_u24 v{Y}, 1152, v{Y}
        v_lshl_add_u32 v{dst}, v{X}, 4, v{Y}
        """)
    NBAR_TAIL = 2
    ROT = os.environ.get("K6_ROT", "0,0").split(",")
    k(f"""
    s_and_b32 s78, s22, 7
    s_mul_i32 s78, s78, {ROT[0]}
    s_mul_i32 s79, s23, {ROT[1]}
    s_add_u32 s78, s78, s79
    s_cmp_ge_u32 s78, 18
    s_cselect_b32 s79, 18, 0
    s_sub_u32 s78, s78, s79
    """)
    ADV = "s_add_u32 s78, s78, 1\ns_cmp_eq_u32 s78, 18\ns_cselect_b32 s78, 0, s78"
    k("s_cmp_ge_u32 s3, 8\ns_cbranch_scc0 L_k6_main")
    k("s_cmp_ge_u32 s3, 10\ns_cbranch_scc1 L_k6_wl")
    k.srd(40, 20, ACT_SZ, ACT)
    k(f"""
    s_sub_u32 s76, s3, 8
    s_lshl_b32 s60, s22, 2
    s_lshl_b32 s77, s76, 1
    s_add_u32 s60, s60, s77
    s_lshl_b32 s60, s60, 12
    s_mul_i32 s77, s24, {18 << 18}
    s_add_u32 s60, s60, s77
    s_add_u32 s61, s60, 4096
    s_lshl_b32 s70, s76, 13
    v_lshlrev_b32 v0, 4, v{L}
    """)
    def dma_a(st):
        buf = st % 4
        for h in range(2):
            k(f"s_lshl_b32 s79, s78, 18")
            k(f"s_add_u32 m0, s70, {buf*STG + h*4096}")
            k(f"s_add_u32 s79, s79, s{60+h}")
            for q in range(4):
                k(f"buffer_load_dwordx4 v0, s[40:43], s79 offen offset:{1024*q} lds")
        k(ADV)
    def loader(dma, n):
        dma(0); dma(1); dma(2)
        k(f"s_waitcnt vmcnt({2*n})\ns_barrier")
        for st in range(NST - 1):
            k(f"s_waitcnt vmcnt({n if st + 2 < NST else 0})\ns_barrier")
            if st + 3 < NST: dma(st + 3)
        for i in range(NBAR_TAIL): k("s_barrier")
        k("s_branch L_k6_end")
    loader(dma_a, 8)
    k("L_k6_wl:")
    k.srd(40, 8, 5308416)
    k(f"""
    s_mul_i32 s60, s24, {1152*1152}
    s_mul_i32 s77, s23, 288
    s_add_u32 s60, s60, s77
    s_sub_u32 s76, s3, 10
    s_mul_i32 s76, s76, 640
    s_lshl_b32 s70, s76, 4
    s_add_u32 s70, s70, 16384
    """)
    for q in range(10):
        wslot(q, "s76", 7)
        k("s_add_u32 s76, s76, 64")
    def dma_w(st):
        buf = st % 4
        k(f"s_mul_i32 s79, s78, {64*1152}\ns_add_u32 s79, s79, s60")
        for q in range(10):
            k(f"s_add_u32 m0, s70, {buf*STG + q*1024}")
            k("s_nop 0")
            k(f"buffer_load_dwordx4 v{q}, s[40:43], s79 offen lds")
        k(ADV)
    loader(dma_w, 10)
    k("L_k6_main:")
    k(f"""
    s_cmp_ge_u32 s3, 4
    s_cbranch_scc1 L_k6_pfw
    s_add_u32 s40, s20, {ACT}
    s_addc_u32 s41, s21, 0
    s_mov_b32 s42, {ACT_SZ}
    s_mov_b32 s43, 0x20000
    s_lshl_b32 s60, s22, 2
    s_add_u32 s60, s60, s23
    s_lshl_b32 s60, s60, 2
    s_add_u32 s60, s60, s3
    s_lshl_b32 s60, s60, 10
    s_mul_i32 s61, s24, {18 << 18}
    s_add_u32 s60, s60, s61
    s_add_u32 s60, s60, {3 << 18}
    s_mov_b32 s61, {1 << 18}
    v_lshlrev_b32 v0, 4, v{L}
    s_branch L_k6_pfd
    L_k6_pfw:
    s_mov_b32 s40, s8
    s_mov_b32 s41, s9
    s_mov_b32 s42, 5308416
    s_mov_b32 s43, 0x20000
    s_mul_i32 s60, s24, {1152*1152}
    s_mul_i32 s61, s23, 288
    s_add_u32 s60, s60, s61
    s_and_b32 s61, s22, 7
    s_mul_i32 s61, s61, {8*1152}
    s_add_u32 s60, s60, s61
    s_add_u32 s60, s60, {3*64*1152}
    s_mov_b32 s61, {64*1152}
    s_sub_u32 s62, s3, 4
    s_min_u32 s62, s62, 2
    s_lshl_b32 s62, s62, 6
    """)
    wslot(0, "s62", 0)
    k("L_k6_pfd:")
    pfn = [3]
    def pf():
        if pfn[0] >= NST or PF == 0: return
        pfn[0] += 1
        d_ = 144 + 4 * (pfn[0] % 4)
        k(f"buffer_load_dwordx4 v[{d_}:{d_+3}], v0, s[40:43], s60 offen")
        k("s_add_u32 s60, s60, s61")
    for i in range(PF): pf()
    k(f"""
    v_lshrrev_b32 v{X}, 1, v{G}
    v_lshlrev_b32 v{X}, 10, v{X}
    v_and_b32 v{Y}, 1, v{G}
    v_lshl_add_u32 v{X}, v{Y}, 9, v{X}
    v_lshl_add_u32 v{X}, v{Tt}, 4, v{X}
    s_lshl_b32 s76, s25, 12
    s_lshl_b32 s77, s26, 11
    s_add_u32 s76, s76, s77
    v_add_u32 v{AT[0]}, s76, v{X}
    v_add_u32 v{AT[1]}, {2*STG}, v{AT[0]}
    v_bfe_u32 v{X}, v{L}, 2, 2
    v_lshl_add_u32 v{X}, v{G}, 3, v{X}
    v_mul_u32_u24 v{X}, 288, v{X}
    v_lshl_add_u32 v{X}, v{G}, 7, v{X}
    v_and_b32 v{Y}, 3, v{L}
    v_lshl_add_u32 v{X}, v{Y}, 3, v{X}
    s_mul_i32 s76, s26, {32*288+512}
    v_add_u32 v{AW[0]}, s76, v{X}
    v_add_u32 v{AW[1]}, {2*STG}, v{AW[0]}
    """)
    NC = os.environ.get('K6_NOCOMP')
    def rdT(st):
        if NC and st > 0: return
        buf = st % 4
        a = AT[buf >> 1]; o = (buf & 1) * STG
        for tf in range(2):
            b = T[st % 2] + 4 * tf
            k(f"ds_read_b128 v[{b}:{b+3}], v{a} offset:{o + 256*tf}")
    def rdW(st, wf):
        if NC and st > 0: return
        buf = st % 4
        a = AW[buf >> 1]; o = (buf & 1) * STG
        for j in range(2):
            b = W + 4 * wf + 2 * j
            k(f"ds_read_b64_tr_b16 v[{b}:{b+1}], v{a} offset:{o + 16384 + j*1152 + wf*32}")
    k("s_barrier")
    k.stamp(0)
    rdT(0)
    for wf in range(9): rdW(0, wf)
    for st in range(NST):
        if st + 1 < NST:
            k("s_barrier")
        nxt = st + 1 < NST
        for wf in range(9):
            n = (16 if wf == 0 else 18) if nxt else 2 * (8 - wf)
            k(f"s_waitcnt lgkmcnt({min(n,15)})")
            for tf in range(2):
                a = acc(wf, tf)
                t = T[st % 2] + 4 * tf
                c = "0" if st == 0 else f"v[{a}:{a+3}]"
                if not (NC and st > 0): k(f"v_mfma_f32_16x16x32_bf16 v[{a}:{a+3}], v[{W+4*wf}:{W+4*wf+3}], v[{t}:{t+3}], {c}")
                if nxt and wf == 0 and tf == 0: rdT(st + 1)
            if nxt: rdW(st + 1, wf)
            if wf == 4: pf()
    k.nop(8)
    k.stamp(1)
    k(f"""
    s_barrier
    s_mul_i32 s76, s25, {18*1024}
    v_lshlrev_b32 v{Y}, 4, v{L}
    v_add_u32 v{X}, s76, v{Y}
    s_lshl_b32 s40, s24, 4
    s_add_u32 s40, s40, s22
    s_lshl_b32 s40, s40, 2
    s_add_u32 s40, s40, s23
    s_lshl_b32 s40, s40, 2
    s_add_u32 s40, s40, s25
    s_mul_i32 s40, s40, {9*1024}
    """)
    k.srd(28, 20, PART_SZ, PART)
    ST = os.environ.get('K6_ST', ' sc1')
    k("s_cmp_eq_u32 s26, 1\ns_cbranch_scc1 L_k6_h1")
    for kh in range(2):
        keep = range(0, 5) if kh == 0 else range(5, 9)
        give = range(5, 9) if kh == 0 else range(0, 5)
        if kh == 1: k("L_k6_h1:\ns_add_u32 s40, s40, 5120")
        for wf in give:
            for tf in range(2):
                a = acc(wf, tf)
                k(f"ds_write_b128 v{X}, v[{a}:{a+3}] offset:{(wf*2+tf)*1024}")
        k("s_waitcnt lgkmcnt(0)\ns_barrier")
        n = 0
        for wf in keep:
            for tf in range(2):
                k(f"ds_read_b128 v[{W+4*n}:{W+4*n+3}], v{X} offset:{(wf*2+tf)*1024}")
                n += 1
        tot = n
        n = 0
        for i, wf in enumerate(keep):
            a0 = acc(wf, 0)
            for tf in range(2):
                a = acc(wf, tf)
                k(f"s_waitcnt lgkmcnt({tot-n-1})")
                for r in range(4):
                    k(f"v_add_f32 v{a+r}, v{a+r}, v{W+4*n+r}")
                n += 1
            for d in range(4):
                k(f"v_cvt_pk_bf16_f32 v{a0+d}, v{a0+2*d}, v{a0+2*d+1}")
            k(f"buffer_store_dwordx4 v[{a0}:{a0+3}], v{Y}, s[28:31], s40 offen offset:{(i%4)*1024}{ST}")
            if i % 4 == 3: k("s_add_u32 s40, s40, 4096")
        k.stamp(2)
        if kh == 0: k("s_branch L_k6_end")
    k("L_k6_end:\ns_endpgm")
    return k

def gen_k7():
    k = Kern("fin_kernel", 576, 256, 0, 64)
    k("""
    s_load_dwordx2 s[4:5], s[0:1], 88
    s_load_dwordx2 s[20:21], s[0:1], 104
    v_and_b32 v1, 63, v0
    v_lshrrev_b32 v2, 6, v0
    v_lshlrev_b32 v4, 4, v1
    v_readfirstlane_b32 s3, v2
    s_cmp_ge_u32 s2, 576
    s_cbranch_scc1 L_k7_end
    s_lshl_b32 s22, s2, 2
    s_add_u32 s22, s22, s3
    s_mul_i32 s23, s22, 7282
    s_lshr_b32 s23, s23, 16
    s_mul_i32 s24, s23, 9
    s_sub_u32 s24, s22, s24
    s_and_b32 s25, s23, 3
    s_lshr_b32 s26, s23, 2
    s_and_b32 s26, s26, 3
    s_lshr_b32 s27, s23, 4
    v_and_b32 v2, 15, v1
    v_lshrrev_b32 v3, 4, v1
    v_mul_u32_u24 v5, 1152, v2
    v_lshl_add_u32 v5, v3, 3, v5
    v_lshlrev_b32 v6, 4, v3
    s_lshl_b32 s40, s22, 10
    s_lshl_b32 s41, s27, 2
    s_add_u32 s41, s41, s25
    s_mul_i32 s41, s41, 36864
    s_mul_i32 s42, s26, 144
    s_lshl_b32 s43, s24, 4
    s_add_u32 s42, s42, s43
    s_lshl_b32 s43, s42, 1
    s_add_u32 s41, s41, s43
    s_add_u32 s43, s41, 18432
    s_lshl_b32 s42, s42, 2
    s_waitcnt lgkmcnt(0)
    """)
    k.stamp(0)
    k.srd(24, 4, S * 1152)
    k.srd(28, 20, X1_SZ, X1)
    k.srd(32, 20, 2304, MOD + 5 * 2304)
    k.srd(36, 20, PART_SZ, PART)
    for sp in range(4):
        k(f"buffer_load_dwordx4 v[{24+4*sp}:{27+4*sp}], v4, s[36:39], s40 offen")
        if sp < 3: k(f"s_add_u32 s40, s40, {S*D*2}")
    k("""
    buffer_load_dwordx2 v[40:41], v5, s[28:31], s41 offen
    buffer_load_dwordx2 v[42:43], v5, s[28:31], s43 offen
    buffer_load_dwordx4 v[44:47], v6, s[32:35], s42 offen
    """)
    for sp in range(4):
        k(f"s_waitcnt vmcnt({6-sp})")
        if sp == 0: k.stamp(1)
        for d in range(4):
            w = 24 + 4 * sp + d
            if sp == 0:
                k(f"v_lshlrev_b32 v{8+2*d}, 16, v{w}")
                k(f"v_and_b32 v{9+2*d}, 0xffff0000, v{w}")
            else:
                k(f"v_lshlrev_b32 v52, 16, v{w}")
                k(f"v_and_b32 v53, 0xffff0000, v{w}")
                k(f"v_add_f32 v{8+2*d}, v{8+2*d}, v52")
                k(f"v_add_f32 v{9+2*d}, v{9+2*d}, v53")
    k("s_waitcnt vmcnt(0)")
    k.stamp(2)
    for d in range(4):
        k(f"v_lshlrev_b32 v52, 16, v{40+d}")
        k(f"v_and_b32 v53, 0xffff0000, v{40+d}")
        k(f"v_fmac_f32 v52, v{44+2*(d&1)}, v{8+2*d}")
        k(f"v_fmac_f32 v53, v{45+2*(d&1)}, v{9+2*d}")
        k(f"v_cvt_pk_bf16_f32 v{56+d}, v52, v53")
    k("""
    buffer_store_dwordx2 v[56:57], v5, s[24:27], s41 offen
    buffer_store_dwordx2 v[58:59], v5, s[24:27], s43 offen
    L_k7_end:
    s_endpgm
    """)
    return k
```

```python
from fw import *
from layout import *
LOG2E = 1.4426950408889634

def bf16r(k, dst, src):
    k(f"v_cvt_pk_bf16_f32 v{dst}, v{src}, v{src}")
    k(f"v_lshlrev_b32 v{dst}, 16, v{dst}")

def gen_k1():
    NG, NPQ, NPO, NLN = 224, 180, 162, 64
    NWM = 0
    k = Kern("prep_kernel", NG + NPQ + NPO + NLN + NWM, 256, 1024, 128)
    k("""
    s_load_dwordx4 s[44:47], s[0:1], 48
    s_load_dwordx8 s[4:11], s[0:1], 0
    s_load_dwordx2 s[12:13], s[0:1], 32
    s_load_dwordx4 s[16:19], s[0:1], 72
    s_load_dwordx2 s[20:21], s[0:1], 104
    v_and_b32 v1, 63, v0
    v_lshrrev_b32 v2, 6, v0
    s_nop 0
    v_readfirstlane_b32 s3, v2
    """)
    k(f"s_cmp_ge_u32 s2, {NG+NPQ+NPO+NLN+NWM}")
    k("s_cbranch_scc1 L_k1_end")
    k("s_waitcnt lgkmcnt(0)")
    k(f"s_cmp_ge_u32 s2, {NG+NPQ+NPO+NLN}")
    k("s_cbranch_scc1 L_k1_warm")
    k(f"s_cmp_lt_u32 s2, {NLN}")
    k("s_cbranch_scc1 L_k1_ln")
    k(f"s_sub_u32 s2, s2, {NLN}")
    k(f"s_cmp_ge_u32 s2, {NG}")
    k("s_cbranch_scc1 L_k1_pack")
    k("""
    s_and_b32 s22, s2, 7
    s_lshr_b32 s23, s2, 3
    s_and_b32 s23, s23, 3
    s_lshr_b32 s24, s2, 5
    s_lshl_b32 s24, s24, 3
    s_add_u32 s24, s24, s22
    s_cmp_ge_u32 s24, 54
    s_cbranch_scc1 L_k1_end
    s_lshl_b32 s24, s24, 2
    s_add_u32 s24, s24, s23
    s_lshl_b32 s25, s24, 4
    """)
    k.srd(28, 18, 576 * 6912)
    k.srd(32, 16, 1152)
    k.srd(36, 20, MOD_SZ, MOD)
    k("""
    v_and_b32 v3, 3, v0
    v_lshrrev_b32 v4, 2, v0
    s_movk_i32 s26, 6912
    v_mul_lo_u32 v5, v4, s26
    v_lshl_add_u32 v5, v3, 3, v5
    v_lshlrev_b32 v6, 1, v4
    s_lshl_b32 s26, s25, 1
    """)
    for p in range(9):
        k(f"buffer_load_ushort v{10+p}, v6, s[32:35], 0 offen offset:{128*p}")
    for p in range(9):
        k(f"buffer_load_dwordx2 v[{20+2*p}:{21+2*p}], v5, s[28:31], s26 offen")
        if p < 8: k(f"s_add_u32 s26, s26, {64*6912}")
    k("v_mov_b32 v40, 0\nv_mov_b32 v41, 0\nv_mov_b32 v42, 0\nv_mov_b32 v43, 0")
    k(f"s_mov_b32 s27, {fhex(-LOG2E)}")
    k.stamp(0)
    k("s_waitcnt vmcnt(9)")
    k.stamp(1)
    for p in range(9):
        c = 10 + p
        k(f"v_lshlrev_b32 v{c}, 16, v{c}")
        k(f"v_mul_f32 v44, s27, v{c}")
        k(f"v_exp_f32 v44, v44")
        k("s_nop 0")
        k(f"v_add_f32 v44, 1.0, v44")
        k(f"v_rcp_f32 v44, v44")
        k("s_nop 0")
        k(f"v_mul_f32 v{c}, v{c}, v44")
        bf16r(k, c, c)
    for p in range(9):
        k(f"s_waitcnt vmcnt({8-p})")
        for d in range(2):
            w = 20 + 2 * p + d
            k(f"v_lshlrev_b32 v44, 16, v{w}")
            k(f"v_and_b32 v45, 0xffff0000, v{w}")
            k(f"v_fmac_f32 v{40+2*d}, v{10+p}, v44")
            k(f"v_fmac_f32 v{41+2*d}, v{10+p}, v45")
    k.stamp(2)
    k.nop(2)
    for sh in (4, 8):
        for i in range(4):
            k(f"v_add_f32_dpp v{40+i}, v{40+i}, v{40+i} row_ror:{sh} row_mask:0xf bank_mask:0xf")
        k.nop(2)
    k("""
    v_lshrrev_b32 v7, 4, v0
    v_lshlrev_b32 v7, 6, v7
    v_lshl_add_u32 v7, v3, 4, v7
    v_and_b32 v8, 15, v0
    v_cmp_gt_u32 vcc, 4, v8
    s_and_saveexec_b64 s[40:41], vcc
    ds_write_b128 v7, v[40:43]
    s_mov_b64 exec, s[40:41]
    s_waitcnt lgkmcnt(0)
    s_barrier
    s_cmp_lg_u32 s3, 0
    s_cbranch_scc1 L_k1_end
    v_cmp_gt_u32 vcc, 16, v0
    s_and_saveexec_b64 s[40:41], vcc
    v_lshlrev_b32 v7, 2, v0
    """)
    for p in range(16):
        k(f"ds_read_b32 v{50+p}, v7 offset:{64*p}")
    k("s_waitcnt lgkmcnt(0)")
    for st in (8, 4, 2, 1):
        for i in range(st):
            k(f"v_add_f32 v{50+i}, v{50+i}, v{50+i+st}")
    bf16r(k, 50, 50)
    k("""
    s_mul_i32 s26, s24, 1821
    s_lshr_b32 s26, s26, 16
    s_cmp_eq_u32 s26, 1
    s_cselect_b32 s27, 1, 0
    s_cmp_eq_u32 s26, 4
    s_cselect_b32 s27, 1, s27
    s_cmp_eq_u32 s27, 0
    s_cbranch_scc1 L_k1_g_store
    v_add_f32 v50, 1.0, v50
    """)
    bf16r(k, 50, 50)
    k("""
    L_k1_g_store:
    s_lshl_b32 s27, s25, 2
    buffer_store_dword v50, v7, s[36:39], s27 offen
    s_sub_u32 s26, s26, 3
    s_cmp_ge_u32 s26, 2
    s_cbranch_scc1 L_k1_end
    """)
    k.srd(40, 20, MODH_SZ, MODH)
    k("""
    s_sub_u32 s27, s25, 1728
    s_mul_i32 s28, s26, 1152
    s_sub_u32 s27, s27, s28
    s_add_u32 s27, s27, 576
    s_lshl_b32 s27, s27, 1
    v_lshrrev_b32 v51, 16, v50
    v_lshlrev_b32 v7, 1, v0
    buffer_store_short v51, v7, s[40:43], s27 offen
    s_branch L_k1_end
    """)
    k(f"""
    L_k1_pack:
    s_sub_u32 s22, s2, {NG}
    s_lshl_b32 s22, s22, 2
    s_add_u32 s22, s22, s3
    v_and_b32 v3, 15, v1
    v_lshrrev_b32 v4, 4, v1
    v_mov_b32 v10, 0
    v_mov_b32 v11, 0
    v_mov_b32 v12, 0
    v_mov_b32 v13, 0
    s_cmp_ge_u32 s22, 720
    s_cbranch_scc1 L_k1_pack_o
    """)
    k.srd(36, 20, WQKV_SZ, WQKV)
    k.srd(28, 6, 576 * 1152)
    k("""
    s_mul_i32 s23, s22, 3641
    s_lshr_b32 s23, s23, 16
    s_mul_i32 s24, s23, 18
    s_sub_u32 s24, s22, s24
    s_cmp_ge_u32 s23, 36
    s_cbranch_scc1 L_k1_pack_kv
    s_branch L_k1_pack_big
    L_k1_pack_o:
    s_sub_u32 s22, s22, 720
    """)
    k.srd(36, 20, WO_SZ, WOP)
    k.srd(28, 12, 576 * 1152)
    k("""
    s_mul_i32 s23, s22, 3641
    s_lshr_b32 s23, s23, 16
    s_mul_i32 s24, s23, 18
    s_sub_u32 s24, s22, s24
    L_k1_pack_big:
    v_lshlrev_b32 v5, 3, v4
    s_lshl_b32 s25, s24, 5
    v_add_u32 v5, s25, v5
    s_movk_i32 s26, 1152
    v_mul_lo_u32 v5, v5, s26
    v_lshl_add_u32 v5, v3, 1, v5
    s_lshl_b32 s25, s23, 5
    s_add_u32 s26, s25, 4608
    """)
    for j in range(8):
        so = "s25" if j < 4 else "s26"
        k(f"buffer_load_ushort v{20+j}, v5, s[28:31], {so} offen offset:{(j&3)*1152}")
    k("s_branch L_k1_pack_st")
    k("""
    L_k1_pack_kv:
    s_cmp_ge_u32 s23, 38
    s_cselect_b32 s28, s10, s8
    s_cselect_b32 s29, s11, s9
    s_mov_b32 s30, 20736
    s_and_b32 s25, s23, 1
    s_lshl_b32 s25, s25, 4
    v_add_u32 v6, s25, v3
    v_lshlrev_b32 v5, 3, v4
    s_lshl_b32 s25, s24, 5
    v_add_u32 v5, s25, v5
    v_mul_u32_u24 v5, 36, v5
    v_lshl_add_u32 v5, v6, 1, v5
    v_cmp_gt_u32 vcc, 18, v6
    v_mov_b32 v7, 0x40000000
    s_nop 0
    v_cndmask_b32 v5, v7, v5, vcc
    """)
    for j in range(8):
        k(f"buffer_load_ushort v{20+j}, v5, s[28:31], 0 offen offset:{j*36}")
    k("""
    L_k1_pack_st:
    v_lshlrev_b32 v6, 4, v1
    s_lshl_b32 s25, s22, 10
    s_waitcnt vmcnt(0)
    v_lshl_or_b32 v10, v21, 16, v20
    v_lshl_or_b32 v11, v23, 16, v22
    v_lshl_or_b32 v12, v25, 16, v24
    v_lshl_or_b32 v13, v27, 16, v26
    buffer_store_dwordx4 v[10:13], v6, s[36:39], s25 offen
    s_branch L_k1_end
    """)
    k(f"""
    L_k1_warm:
    s_sub_u32 s22, s2, {NG+NPQ+NPO+NLN}
    s_lshl_b32 s22, s22, 2
    s_add_u32 s22, s22, s3
    s_cmp_ge_u32 s22, 648
    s_cselect_b32 s28, s46, s44
    s_cselect_b32 s29, s47, s45
    s_cselect_b32 s23, 648, 0
    s_mov_b32 s30, 5308416
    s_mov_b32 s31, 0x20000
    s_sub_u32 s22, s22, s23
    s_lshl_b32 s22, s22, 13
    v_lshlrev_b32 v5, 4, v1
    """)
    for j in range(8):
        k(f"buffer_load_dwordx4 v[{8+4*j}:{11+4*j}], v5, s[28:31], s22 offen offset:{1024*(j&3)}")
        if j == 3: k("s_add_u32 s22, s22, 4096")
    k("s_waitcnt vmcnt(0)\ns_branch L_k1_end")
    k(f"""
    L_k1_ln:
    s_mov_b32 s22, s2
    s_mul_i32 s23, s22, {32*1152}
    v_and_b32 v3, 7, v0
    v_lshrrev_b32 v4, 3, v0
    v_mul_u32_u24 v5, 1152, v4
    v_lshl_add_u32 v5, v3, 4, v5
    """)
    k.srd(28, 4, S * 1152)
    k.srd(36, 20, ST1_SZ, ST1)
    for j in range(9):
        k(f"buffer_load_dwordx4 v[{12+4*j}:{15+4*j}], v5, s[28:31], s23 offen offset:{128*j}")
    def red8(r):
        k.nop(2)
        k(f"v_add_f32_dpp v{r}, v{r}, v{r} quad_perm:[1,0,3,2] row_mask:0xf bank_mask:0xf")
        k.nop(2)
        k(f"v_add_f32_dpp v{r}, v{r}, v{r} quad_perm:[2,3,0,1] row_mask:0xf bank_mask:0xf")
        k.nop(2)
        k(f"v_add_f32_dpp v{r}, v{r}, v{r} row_half_mirror row_mask:0xf bank_mask:0xf")
    k("v_mov_b32 v60, 0x3f803f80")
    for i in range(4): k(f"v_mov_b32 v{50+i}, 0")
    for j in range(9):
        k(f"s_waitcnt vmcnt({8-j})")
        for d in range(4):
            k(f"v_dot2c_f32_bf16 v{50+(d&1)}, v{12+4*j+d}, v60")
            k(f"v_dot2c_f32_bf16 v{52+(d&1)}, v{12+4*j+d}, v{12+4*j+d}")
    k.nop(3)
    k("v_add_f32 v6, v50, v51\nv_add_f32 v8, v52, v53")
    red8(6); red8(8)
    k(f"v_mul_f32 v6, {fhex(1.0/576)}, v6")
    k(f"v_mul_f32 v8, {fhex(1.0/576)}, v8")
    k("v_fma_f32 v8, -v6, v6, v8\nv_max_f32 v8, 0, v8")
    bf16r(k, 8, 8)
    k(f"v_add_f32 v8, {fhex(1e-5)}, v8")
    bf16r(k, 8, 8)
    k("v_sqrt_f32 v8, v8\ns_nop 0")
    bf16r(k, 8, 8)
    k("v_rcp_f32 v8, v8")
    bf16r(k, 6, 6)
    k("""
    v_mul_f32 v9, v6, v8
    v_sub_f32 v9, 0, v9
    v_lshlrev_b32 v7, 3, v4
    s_lshl_b32 s23, s22, 8
    v_cmp_eq_u32 vcc, 0, v3
    s_and_saveexec_b64 s[40:41], vcc
    buffer_store_dwordx2 v[8:9], v7, s[36:39], s23 offen
    L_k1_end:
    s_endpgm
    """)
    return k
```

```python
import os
from fw import *
from layout import *

def gen_k3():
    k = Kern("attn_kernel", 256, 512, 163840, 168)
    HALF = 32 * KV_TILE
    Q1 = [8, 16]; Q2 = [12, 20]
    K1 = [24, 28]; K2 = [32, 36]
    V = [[40, 44], [48, 52]]
    Sb = [56, 72]
    P = 88
    OA = [96, 112]
    AK1, AK2, AV = 128, 129, 130
    CF, WF, CA, AD, AT_, AC = 132, 136, 140, 144, 145, 146
    X = 148
    WARM = os.environ.get("K3_WARM", "gud")
    NOSIDE = os.environ.get("K3_NOSIDE")
    PRIO = os.environ.get("K3_PRIO", "")
    VZ = os.environ.get("K3_VZ", "1") == "1"
    k(f"""
    s_load_dwordx2 s[20:21], s[0:1], 104
    s_load_dwordx4 s[64:67], s[0:1], 48
    s_load_dwordx2 s[68:69], s[0:1], 64
    v_and_b32 v1, 63, v0
    v_lshrrev_b32 v2, 6, v0
    v_lshlrev_b32 v7, 4, v1
    v_readfirstlane_b32 s3, v2
    s_cmp_ge_u32 s2, 256
    s_cbranch_scc1 L_k3_end
    s_and_b32 s4, s3, 3
    s_lshr_b32 s5, s3, 2
    s_lshl_b32 s22, s2, 3
    s_lshl_b32 s6, s4, 1
    s_add_u32 s22, s22, s6
    s_mul_i32 s22, s22, 1152
    s_add_u32 s6, s22, 1152
    v_and_b32 v3, 31, v1
    v_lshrrev_b32 v4, 5, v1
    v_mul_u32_u24 v6, 36, v3
    v_lshl_add_u32 v5, v4, 4, v6
    s_mul_i32 s7, s5, {HALF}
    s_lshl_b32 s23, s4, 10
    s_add_u32 s23, s23, s7
    s_waitcnt lgkmcnt(0)
    """)
    k.srd(24, 20, Q_SZ, Q)
    k.srd(28, 20, KMAX_SZ, KMAX)
    k.srd(32, 20, KV_SZ, KV)
    k.srd(36, 20, O_SZ, O)
    k(f"""
    buffer_load_dwordx4 v[{Q1[0]}:{Q1[0]+3}], v5, s[24:27], s22 offen
    buffer_load_dword v{Q2[0]}, v6, s[24:27], s22 offen offset:32
    buffer_load_dwordx4 v[{Q1[1]}:{Q1[1]+3}], v5, s[24:27], s6 offen
    buffer_load_dword v{Q2[1]}, v6, s[24:27], s6 offen offset:32
    buffer_load_dwordx4 v[{X}:{X+3}], v7, s[28:31], 0 offen
    s_mov_b32 s49, s23
    """)
    def dma1():
        k("s_mov_b32 m0, s49\ns_nop 0\nbuffer_load_dwordx4 v7, s[32:35], s49 offen lds\ns_add_u32 s49, s49, 4096")
    for j in range(4): dma1()
    k(f"""
    v_add_u32 v{AK1}, s7, v7
    v_lshlrev_b32 v{AK2}, 3, v3
    v_add_u32 v{AK2}, 1024, v{AK2}
    v_add_u32 v{AK2}, s7, v{AK2}
    v_subrev_u32 v{X+4}, 20, v3
    v_subrev_u32 v{X+5}, 12, v3
    v_cmp_gt_u32 vcc, 24, v3
    s_nop 1
    v_cndmask_b32 v{X+4}, v{X+5}, v{X+4}, vcc
    v_min_u32 v{X+4}, 18, v{X+4}
    v_cmp_gt_u32 vcc, 19, v3
    s_nop 1
    v_cndmask_b32 v{X+4}, v{X+4}, v3, vcc
    v_mul_u32_u24 v{AV}, 304, v4
    v_lshl_add_u32 v{AV}, v{X+4}, 4, v{AV}
    v_add_u32 v{AV}, 1280, v{AV}
    v_add_u32 v{AV}, s7, v{AV}
    """)
    for q in range(2):
        for r in (1, 2, 3): k(f"v_mov_b32 v{Q2[q]+r}, 0")
        for r in (2, 3): k(f"v_mov_b32 v{K2[q]+r}, 0")
        for i in range(16): k(f"v_mov_b32 v{OA[q]+i}, 0")
    for i in range(4):
        k(f"v_mov_b32 v{P+4+i}, 0\nv_mov_b32 v{V[1][1]+i}, 0\nv_mov_b32 v{CA+i}, 0")
    k(f"""
    s_cmp_lt_u32 s2, 144
    s_cselect_b32 s50, 1, 0
    s_cmp_ge_u32 s2, 72
    s_cselect_b32 s51, 1, 0
    s_cselect_b32 s8, s66, s64
    s_cselect_b32 s9, s67, s65
    s_mov_b32 s10, 5308416
    s_mov_b32 s11, 0x20000
    s_mul_i32 s77, s51, 72
    s_sub_u32 s77, s2, s77
    s_lshl_b32 s77, s77, 2
    s_add_u32 s77, s77, s4
    s_lshl_b32 s79, s77, 5
    s_lshl_b32 s78, s4, 10
    s_add_u32 s78, s78, {64*KV_TILE}
    v_lshrrev_b32 v{AD}, 1, v1
    s_movk_i32 s40, 9216
    v_mul_lo_u32 v{AD}, v{AD}, s40
    v_and_b32 v{AT_}, 1, v1
    v_lshl_add_u32 v{AD}, v{AT_}, 4, v{AD}
    v_lshrrev_b32 v{AC}, 4, v1
    v_bfe_u32 v{AT_}, v1, 2, 2
    v_lshl_add_u32 v{AT_}, v{AC}, 3, v{AT_}
    v_lshlrev_b32 v{AT_}, 5, v{AT_}
    v_and_b32 v{CF}, 3, v1
    v_lshl_add_u32 v{AT_}, v{CF}, 3, v{AT_}
    v_add_u32 v{AT_}, s78, v{AT_}
    v_and_b32 v{CF}, 15, v1
    v_mul_u32_u24 v{CF}, 1152, v{CF}
    v_lshl_add_u32 v{AC}, v{AC}, 4, v{CF}
    s_mov_b32 s41, 0
    s_lshl_b32 s76, s2, 2
    s_add_u32 s76, s76, s4
    s_mul_i32 s76, s76, 5184
    s_mov_b32 s70, s76
    s_mov_b32 s72, s64
    s_mov_b32 s73, s65
    s_mov_b32 s74, 5308416
    s_mov_b32 s75, 0x20000
    """)
    k.srd(44, 20, MODH_SZ, MODH)
    k("s_mov_b32 s58, 0x7ffff\ns_mov_b32 s59, 0x7ffff")
    for i in range(16): k(f"v_mov_b32 v{V[0][0]+i}, 0")
    N0, N1, BP = X + 4, X + 5, X + 6
    k(f"""
    s_waitcnt vmcnt(4)
    v_cmp_eq_u32 vcc, 0, v4
    v_xor_b32 v{BP}, 32, v1
    v_lshlrev_b32 v{BP}, 2, v{BP}
    v_cndmask_b32 v{Q2[0]}, 0, v{Q2[0]}, vcc
    v_cndmask_b32 v{Q2[1]}, 0, v{Q2[1]}, vcc
    v_mov_b32 v{N0}, 0
    v_mov_b32 v{N1}, 0
    """)
    for q, n in ((0, N0), (1, N1)):
        for i in range(4): k(f"v_dot2c_f32_bf16 v{n}, v{Q1[q]+i}, v{Q1[q]+i}")
        k(f"v_dot2c_f32_bf16 v{n}, v{Q2[q]}, v{Q2[q]}")
    k(f"v_max_f32 v{X+2}, v{X+2}, v{X+3}")
    k.nop(3)
    k(f"ds_bpermute_b32 v{X+7}, v{BP}, v{N0}\nds_bpermute_b32 v{X+8}, v{BP}, v{N1}")
    for sh in (1, 2, 4, 8):
        for r in (X, X + 1, X + 2):
            k(f"v_max_f32_dpp v{r}, v{r}, v{r} row_ror:{sh} row_mask:0xf bank_mask:0xf")
    k.nop(1)
    for i, r in enumerate((X, X + 1, X + 2)):
        for j in range(2):
            k(f"v_readlane_b32 s{52+2*i+j}, v{r}, {16*j}")
    k("s_nop 3")
    for i in range(3):
        k(f"s_max_u32 s{52+2*i}, s{52+2*i}, s{53+2*i}")
    k(f"""
    v_mov_b32 v{X+9}, s52
    v_add_f32 v{X+9}, s54, v{X+9}
    s_waitcnt lgkmcnt(0)
    v_add_f32 v{N0}, v{N0}, v{X+7}
    v_add_f32 v{N1}, v{N1}, v{X+8}
    v_max_f32 v{N0}, v{N0}, v{N1}
    v_mul_f32 v{N0}, v{N0}, v{X+9}
    s_mov_b32 s40, {fhex(3600.0)}
    v_cmp_nge_f32 vcc, s40, v{N0}
    s_nop 3
    s_cmp_lg_u64 vcc, 0
    s_cselect_b32 s48, 1, 0
    s_cmp_gt_u32 s56, {fhex(2.0**40)}
    s_cselect_b32 s48, 1, s48
    s_waitcnt vmcnt(0)
    s_barrier
    """)
    k("L_k3_main:")
    ds = DSTrack(k)
    def rdK(rel):
        b = rel % 2
        ds.read(f"ds_read_b128 v[{K1[b]}:{K1[b]+3}], v{AK1} offset:{rel*KV_TILE}", K1[b], 4)
        ds.read(f"ds_read_b64 v[{K2[b]}:{K2[b]+1}], v{AK2} offset:{rel*KV_TILE}", K2[b], 2)
    def rdV(rel):
        b = rel % 2
        if VZ: k("s_mov_b64 exec, s[58:59]")
        ds.read(f"ds_read_b128 v[{V[b][0]}:{V[b][0]+3}], v{AV} offset:{rel*KV_TILE}", V[b][0], 4)
        ds.read(f"ds_read_b128 v[{V[b][1]}:{V[b][1]+3}], v{AV} offset:{rel*KV_TILE+608}", V[b][1], 4)
        if VZ: k("s_mov_b64 exec, -1")
    def mf_qk1(u):
        t, q = u // 2, u % 2
        k(f"v_mfma_f32_32x32x16_bf16 v[{Sb[q]}:{Sb[q]+15}], v[{K1[t%2]}:{K1[t%2]+3}], v[{Q1[q]}:{Q1[q]+3}], 0")
    def mf_qk2(u):
        t, q = u // 2, u % 2
        k(f"v_mfma_f32_32x32x16_bf16 v[{Sb[q]}:{Sb[q]+15}], v[{K2[t%2]}:{K2[t%2]+3}], v[{Q2[q]}:{Q2[q]+3}], v[{Sb[q]}:{Sb[q]+15}]")
    def mf_pv(u, h):
        t, q = u // 2, u % 2
        k(f"v_mfma_f32_32x32x16_bf16 v[{OA[q]}:{OA[q]+15}], v[{V[t%2][h]}:{V[t%2][h]+3}], v[{P+4*h}:{P+4*h+3}], v[{OA[q]}:{OA[q]+15}]")
    def ex(u, lo, hi):
        for i in range(lo, hi): k(f"v_exp_f32 v{Sb[u%2]+i}, v{Sb[u%2]+i}")
    def cv(u, lo, hi):
        for i in range(lo, hi): k(f"v_cvt_pk_bf16_f32 v{P+i}, v{Sb[u%2]+2*i}, v{Sb[u%2]+2*i+1}")
    def side_issue():
        k(f"""
        s_mov_b32 m0, s78
        s_nop 0
        buffer_load_dwordx4 v{AD}, s[8:11], s79 offen lds
        buffer_load_dwordx4 v[{CF}:{CF+3}], v{AC}, s[44:47], s41 offen
        s_add_u32 s79, s79, {32*9216}
        s_add_u32 s41, s41, 64
        """)
    k.stamp(0)
    def fill():
        rdK(0); rdV(0); rdK(1)
        ds.need((K1[0], 4), (K2[0], 2))
        mf_qk1(0); mf_qk2(0)
        k.nop(10)
    fill()
    head = [min(x) for x in ds.fifo]
    def body(kind):
        assert [min(x) for x in ds.fifo] == head, ([min(x) for x in ds.fifo], head)
        for u in range(4):
            t, q = u // 2, u % 2
            tn = (u + 1) // 2
            if PRIO: k(f"s_setprio {3-u}")
            ds.need((K1[tn % 2], 4))
            mf_qk1(u + 1)
            ex(u, 0, 4)
            mf_pv(u - 1, 1)
            if q == 0: rdV(t + 1)
            ex(u, 4, 8)
            if kind == "dma": dma1()
            if kind == "warm":
                k(f"buffer_load_dwordx4 v[{X+4*u}:{X+3+4*u}], v7, s[72:75], s76 offen offset:{1024*(u%2)}")
                if q == 1:
                    k(f"""
                    s_add_u32 s76, s76, 2048
                    s_sub_u32 s71, s71, 1
                    s_cmp_eq_u32 s71, 7
                    s_cselect_b32 s72, s66, s72
                    s_cselect_b32 s73, s67, s73
                    s_cselect_b32 s76, s70, s76
                    s_cmp_eq_u32 s71, 4
                    s_cselect_b32 s72, s68, s72
                    s_cselect_b32 s73, s69, s73
                    s_cselect_b32 s76, s70, s76
                    """)
            if kind == "side" and q == 0:
                k(f"""
                s_waitcnt vmcnt(0)
                ds_read_b64_tr_b16 v[{WF}:{WF+1}], v{AT_}
                ds_read_b64_tr_b16 v[{WF+2}:{WF+3}], v{AT_} offset:128
                """)
            ds.need((K2[tn % 2], 2))
            ds.need((V[t % 2][0], 8))
            cv(u, 0, 4)
            mf_qk2(u + 1)
            if q == 0: rdK(t + 2)
            ex(u, 8, 12)
            mf_pv(u, 0)
            if kind == "side" and q == 0:
                k("s_waitcnt lgkmcnt(0)")
                k(f"v_mfma_f32_16x16x32_bf16 v[{CA}:{CA+3}], v[{WF}:{WF+3}], v[{CF}:{CF+3}], v[{CA}:{CA+3}]")
                side_issue()
            ex(u, 12, 16)
            if u == 3:
                for A_ in (AK1, AK2, AV):
                    k(f"v_add_u32 v{A_}, {2*KV_TILE}, v{A_}")
                k("s_sub_u32 s40, s40, 1\ns_cmp_lg_u32 s40, 0")
            elif not PRIO:
                k("s_nop 0")
            cv(u, 4, 8)
        if PRIO: k("s_barrier")
    def loop(kind, n, name):
        if n: k(f"s_mov_b32 s40, {n}")
        k(f".p2align 6\n{name}:")
        body(kind)
        k(f"s_cbranch_scc1 {name}")
    loop("dma", 2, "L_k3_l1")
    k("s_waitcnt vmcnt(4)\ns_barrier")
    loop("dma", 2, "L_k3_l2")
    k("s_mov_b32 s40, 1\ns_mov_b32 s43, 2\ns_branch L_k3_plain")
    k("L_k3_b2:\ns_waitcnt vmcnt(0)\ns_barrier")
    k.stamp(2)
    k("s_mov_b32 s43, 0\ns_cmp_ge_u32 s3, 4\ns_cbranch_scc1 L_k3_w")
    k("s_mov_b32 s40, 11")
    if not NOSIDE:
        k("s_cmp_eq_u32 s50, 0\ns_cbranch_scc1 L_k3_plain\ns_mov_b32 s40, 1\ns_mov_b32 s43, 1")
    k("s_branch L_k3_plain")
    k("L_k3_w:")
    if WARM:
        k("s_mov_b32 s71, 10")
        loop("warm", 5, "L_k3_lw")
        k("s_mov_b32 s40, 6")
    else:
        k("s_mov_b32 s40, 11")
    k("L_k3_plain:")
    loop("plain", 0, "L_k3_lp")
    k("s_cmp_eq_u32 s43, 0\ns_cbranch_scc1 L_k3_done")
    k("s_cmp_eq_u32 s43, 2\ns_cbranch_scc1 L_k3_b2")
    k("s_cmp_eq_u32 s43, 3\ns_cbranch_scc1 L_k3_ls1")
    side_issue()
    k("s_mov_b32 s43, 3\ns_mov_b32 s40, 1\ns_branch L_k3_plain\nL_k3_ls1:")
    loop("side", 9, "L_k3_ls")
    k("L_k3_done:")
    k("s_waitcnt lgkmcnt(0)")
    mf_pv(3, 1)
    k("s_cmp_eq_u32 s48, 0\ns_cbranch_scc1 L_k3_fin\ns_mov_b32 s48, 0")
    k.nop(12)
    k(f"""
    v_mov_b32 v{X}, 0xff7fffff
    v_mov_b32 v{X+1}, 0xff7fffff
    v_mov_b32 v{X+2}, v7
    v_subrev_u32 v{X+3}, s7, v{AK2}
    v_subrev_u32 v{X+3}, {HALF}, v{X+3}
    s_mov_b32 s40, 0
    L_k3_pre:
    ds_read_b128 v[{K1[0]}:{K1[0]+3}], v{X+2}
    ds_read_b64 v[{K2[0]}:{K2[0]+1}], v{X+3}
    v_add_u32 v{X+2}, {KV_TILE}, v{X+2}
    v_add_u32 v{X+3}, {KV_TILE}, v{X+3}
    s_waitcnt lgkmcnt(0)
    """)
    for q in range(2):
        k(f"v_mfma_f32_32x32x16_bf16 v[{Sb[q]}:{Sb[q]+15}], v[{K1[0]}:{K1[0]+3}], v[{Q1[q]}:{Q1[q]+3}], 0")
        k(f"v_mfma_f32_32x32x16_bf16 v[{Sb[q]}:{Sb[q]+15}], v[{K2[0]}:{K2[0]+3}], v[{Q2[q]}:{Q2[q]+3}], v[{Sb[q]}:{Sb[q]+15}]")
    k("s_nop 12")
    for q in range(2):
        for i in range(0, 16, 2):
            k(f"v_max3_f32 v{X+q}, v{Sb[q]+i}, v{Sb[q]+i+1}, v{X+q}")
    k(f"""
    s_add_u32 s40, s40, 1
    s_cmp_lt_u32 s40, 64
    s_cbranch_scc1 L_k3_pre
    v_xor_b32 v{BP}, 32, v1
    v_lshlrev_b32 v{BP}, 2, v{BP}
    v_cmp_eq_u32 vcc, 0, v4
    ds_bpermute_b32 v{X+2}, v{BP}, v{X}
    ds_bpermute_b32 v{X+3}, v{BP}, v{X+1}
    s_waitcnt lgkmcnt(0)
    """)
    for q in range(2):
        k(f"""
        v_max_f32 v{X+q}, v{X+q}, v{X+2+q}
        v_sub_f32 v{X+q}, 0, v{X+q}
        v_cvt_pk_bf16_f32 v{X+4}, v{X+q}, v{X+q}
        v_lshlrev_b32 v{X+4}, 16, v{X+4}
        v_sub_f32 v{X+5}, v{X+q}, v{X+4}
        v_cvt_pk_bf16_f32 v{X+4}, v{X+4}, v{X+5}
        v_cndmask_b32 v{Q2[q]+1}, 0, v{X+4}, vcc
        """)
    for q in range(2):
        for i in range(16): k(f"v_mov_b32 v{OA[q]+i}, 0")
    for i in range(4):
        k(f"v_mov_b32 v{P+4+i}, 0\nv_mov_b32 v{V[1][1]+i}, 0")
    for A_ in (AK1, AK2, AV):
        k(f"v_subrev_u32 v{A_}, {HALF}, v{A_}")
    ds.fifo = []
    fill()
    k("s_mov_b32 s43, 0\ns_mov_b32 s40, 16\ns_branch L_k3_plain")
    k("L_k3_fin:")
    k.nop(12)
    k.stamp(1)
    k(f"""
    s_setprio 0
    s_barrier
    s_lshl_b32 s40, s3, 12
    v_add_u32 v{X}, s40, v7
    s_xor_b32 s40, s3, 4
    s_lshl_b32 s40, s40, 12
    v_add_u32 v{X+1}, s40, v7
    s_cmp_eq_u32 s5, 0
    s_cbranch_scc1 L_k3_h0
    """)
    for i in range(12):
        k(f"v_swap_b32 v{OA[0]+i}, v{OA[1]+i}")
    k("s_mov_b32 s22, s6\nL_k3_h0:")
    for i in range(3):
        k(f"ds_write_b128 v{X}, v[{OA[1]+4*i}:{OA[1]+4*i+3}] offset:{1024*i}")
    k("s_waitcnt lgkmcnt(0)\ns_barrier")
    for i in range(3):
        k(f"ds_read_b128 v[{OA[1]+4*i}:{OA[1]+4*i+3}], v{X+1} offset:{1024*i}")
    k.srd(12, 20, CS_SZ, CS)
    k(f"""
    v_lshlrev_b32 v{X+2}, 2, v3
    v_mul_u32_u24 v5, 36, v3
    v_lshl_add_u32 v5, v4, 3, v5
    s_waitcnt lgkmcnt(0)
    """)
    O_ = OA[0]
    for i in range(11):
        k(f"v_add_f32 v{O_+i}, v{O_+i}, v{OA[1]+i}")
    k(f"""
    ds_bpermute_b32 v{X+3}, v{X+2}, v{O_+10}
    s_waitcnt lgkmcnt(0)
    v_rcp_f32 v{X+3}, v{X+3}
    s_nop 0
    """)
    for i in range(10):
        k(f"v_mul_f32 v{O_+i}, v{O_+i}, v{X+3}")
    for i in range(5):
        k(f"v_cvt_pk_bf16_f32 v{P+i}, v{O_+2*i}, v{O_+2*i+1}")
    k(f"""
    buffer_store_dwordx2 v[{P}:{P+1}], v5, s[36:39], s22 offen
    buffer_store_dwordx2 v[{P+2}:{P+3}], v5, s[36:39], s22 offen offset:16
    v_cmp_eq_u32 vcc, 0, v4
    s_and_saveexec_b64 s[42:43], vcc
    buffer_store_dword v{P+4}, v5, s[36:39], s22 offen offset:32
    s_mov_b64 exec, s[42:43]
    s_cmp_eq_u32 s50, 0
    s_cbranch_scc1 L_k3_end
    s_cmp_ge_u32 s3, 4
    s_cbranch_scc1 L_k3_end
    s_lshl_b32 s40, s51, 1
    s_mul_i32 s40, s40, {F*4}
    s_lshl_b32 s41, s77, 6
    s_add_u32 s40, s40, s41
    v_and_b32 v{WF}, 15, v1
    v_lshrrev_b32 v{WF+1}, 4, v1
    s_movk_i32 s41, {F*4}
    v_mul_lo_u32 v{WF+2}, v{WF}, s41
    v_lshl_add_u32 v{WF+2}, v{WF+1}, 4, v{WF+2}
    v_cmp_gt_u32 vcc, 2, v{WF}
    s_and_saveexec_b64 s[42:43], vcc
    buffer_store_dwordx4 v[{CA}:{CA+3}], v{WF+2}, s[12:15], s40 offen
    L_k3_end:
    s_endpgm
    """)
    return k
```

```python
import os
from fw import *
from layout import *
from k2 import small_gemm, gemm_addr

def gen_k4():
    k = Kern("wo_kernel", 256, 576, 36864 + 9216, 128)
    TB, ACC, XR, GA, CB, AX, AP = 80, 104, 112, 116, 120, 124, 125
    k("""
    s_load_dwordx2 s[4:5], s[0:1], 0
    s_load_dwordx2 s[20:21], s[0:1], 104
    v_and_b32 v1, 63, v0
    v_lshrrev_b32 v2, 6, v0
    s_nop 0
    v_readfirstlane_b32 s3, v2
    s_cmp_ge_u32 s2, 256
    s_cbranch_scc1 L_k4_end
    s_movk_i32 s22, 911
    v_mul_lo_u32 v2, v0, s22
    v_lshrrev_b32 v2, 16, v2
    v_mul_u32_u24 v3, 72, v2
    v_sub_u32 v3, v0, v3
    s_and_b32 s22, s2, 7
    s_lshl_b32 s22, s22, 3
    s_lshr_b32 s23, s2, 3
    s_and_b32 s23, s23, 7
    s_add_u32 s22, s22, s23
    s_lshr_b32 s49, s2, 6
    s_mul_i32 s23, s49, 9
    s_add_u32 s23, s23, s3
    s_waitcnt lgkmcnt(0)
    """)
    k.stamp(3)
    k.srd(24, 4, S * 1152)
    k.srd(28, 20, O_SZ, O)
    k.srd(32, 20, MOD_SZ, MOD)
    k.srd(36, 20, WO_SZ, WOP)
    k("""
    v_mul_u32_u24 v4, 1152, v2
    v_lshl_add_u32 v4, v3, 4, v4
    s_mul_i32 s40, s22, 36864
    s_mov_b32 s41, s40
    """)
    for p in range(4):
        k(f"buffer_load_dwordx4 v[{TB+4*p}:{TB+3+4*p}], v4, s[28:31], s40 offen")
        if p < 3: k("s_add_u32 s40, s40, 9216")
    k(f"""
    v_and_b32 v5, 15, v1
    v_lshrrev_b32 v6, 4, v1
    v_mul_u32_u24 v{AX}, 1152, v5
    v_lshl_add_u32 v{AX}, v6, 3, v{AX}
    s_lshl_b32 s42, s23, 5
    s_add_u32 s41, s41, s42
    s_add_u32 s42, s41, 18432
    v_lshlrev_b32 v{AP}, 4, v6
    s_lshl_b32 s43, s23, 6
    s_add_u32 s43, s43, 4608
    s_add_u32 s44, s43, 4608
    buffer_load_dwordx2 v[{XR}:{XR+1}], v{AX}, s[24:27], s41 offen
    buffer_load_dwordx2 v[{XR+2}:{XR+3}], v{AX}, s[24:27], s42 offen
    buffer_load_dwordx4 v[{GA}:{GA+3}], v{AP}, s[32:35], s43 offen
    buffer_load_dwordx4 v[{CB}:{CB+3}], v{AP}, s[32:35], s44 offen
    v_lshlrev_b32 v7, 4, v1
    s_mul_i32 s40, s23, 18432
    """)
    k("""
    v_xor_b32 v5, v3, v2
    v_mul_u32_u24 v4, 1152, v2
    v_lshl_add_u32 v4, v5, 4, v4
    """)
    def wl(a, b):
        for ks in range(a, b):
            k(f"buffer_load_dwordx4 v[{8+4*ks}:{11+4*ks}], v7, s[36:39], s40 offen offset:{(ks&3)*1024}")
            if ks & 3 == 3: k("s_add_u32 s40, s40, 4096")
    NE = int(os.environ.get('K4_NE', '8'))
    wl(0, NE)
    for p in range(4):
        k(f"s_waitcnt vmcnt({NE+4+3-p})")
        k(f"ds_write_b128 v4, v[{TB+4*p}:{TB+3+4*p}] offset:{9216*p}")
    k.stamp(0)
    k("s_waitcnt lgkmcnt(0)\ns_barrier")
    wl(NE, 18)
    gemm_addr(k)
    k.stamp(1)
    small_gemm(k, 8, TB, 6, ACC, 5, 6, False)
    k.stamp(2)
    k.srd(24, 20, X1_SZ, X1)
    k.srd(28, 20, X1P_SZ, X1P)
    k.srd(32, 20, ST2_SZ, ST2)
    k(f"""
    s_and_b32 s45, s23, 1
    s_lshl_b32 s45, s45, 1
    v_lshrrev_b32 v{AP}, 1, v4
    v_add_u32 v{AP}, s45, v{AP}
    v_lshrrev_b32 v126, 2, v3
    v_sub_u32 v126, 4, v126
    v_xor_b32 v{AP}, v{AP}, v126
    v_and_b32 v{AP}, 3, v{AP}
    v_lshlrev_b32 v{AP}, 4, v{AP}
    v_lshl_add_u32 v{AP}, v3, 6, v{AP}
    v_and_b32 v126, 1, v4
    v_lshl_add_u32 v{AP}, v126, 3, v{AP}
    s_lshr_b32 s45, s22, 3
    s_lshr_b32 s46, s23, 1
    s_lshl_b32 s46, s46, 3
    s_add_u32 s45, s45, s46
    s_lshl_b32 s45, s45, 14
    s_and_b32 s46, s22, 7
    s_lshl_b32 s46, s46, 11
    s_add_u32 s45, s45, s46
    """)
    for tt in range(2):
        xs = XR + 2 * tt
        a = ACC + 4 * tt
        k(f"""
        v_lshlrev_b32 v80, 16, v{xs}
        v_and_b32 v81, 0xffff0000, v{xs}
        v_lshlrev_b32 v82, 16, v{xs+1}
        v_and_b32 v83, 0xffff0000, v{xs+1}
        """)
        for i in range(4):
            k(f"v_fmac_f32 v{80+i}, v{GA+i}, v{a+i}")
        o = 84 + 8 * tt
        k(f"""
        v_cvt_pk_bf16_f32 v{o}, v80, v81
        v_cvt_pk_bf16_f32 v{o+1}, v82, v83
        v_lshlrev_b32 v80, 16, v{o}
        v_and_b32 v81, 0xffff0000, v{o}
        v_lshlrev_b32 v82, 16, v{o+1}
        v_and_b32 v83, 0xffff0000, v{o+1}
        v_add_f32 v{o+4}, v80, v81
        v_add_f32 v{o+5}, v82, v83
        v_add_f32 v{o+4}, v{o+4}, v{o+5}
        v_mul_f32 v{o+5}, v80, v80
        v_fmac_f32 v{o+5}, v81, v81
        v_fmac_f32 v{o+5}, v82, v82
        v_fmac_f32 v{o+5}, v83, v83
        """)
        for i in range(4):
            k(f"v_mul_f32 v{80+i}, v{80+i}, v{CB+i}")
        k(f"""
        v_cvt_pk_bf16_f32 v{o+2}, v80, v81
        v_cvt_pk_bf16_f32 v{o+3}, v82, v83
        buffer_store_dwordx2 v[{o}:{o+1}], v{AX}, s[24:27], s{41+tt} offen
        buffer_store_dwordx2 v[{o+2}:{o+3}], v{AP}, s[28:31], s45 offen offset:{1024*tt}
        """)
    k("""
    s_lshl_b32 s40, s3, 2
    v_add_u32 v7, s40, v4
    v_lshlrev_b32 v7, 8, v7
    v_lshl_add_u32 v7, v3, 3, v7
    ds_write_b64 v7, v[88:89] offset:36864
    ds_write_b64 v7, v[96:97] offset:36992
    s_waitcnt lgkmcnt(0)
    s_barrier
    s_cmp_lg_u32 s3, 0
    s_cbranch_scc1 L_k4_end
    v_lshlrev_b32 v7, 2, v1
    """)
    for p in range(36):
        k(f"ds_read_b32 v{8+p}, v7 offset:{36864 + 256*p}")
        if p % 12 == 11: k("s_waitcnt lgkmcnt(0)")
    for a in range(4):
        for i in range(a + 4, 36, 4):
            k(f"v_add_f32 v{8+a}, v{8+a}, v{8+i}")
    k("""
    v_add_f32 v8, v8, v9
    v_add_f32 v10, v10, v11
    v_add_f32 v8, v8, v10
    v_lshrrev_b32 v5, 1, v1
    v_and_b32 v6, 1, v1
    v_lshlrev_b32 v5, 5, v5
    v_lshl_add_u32 v5, v6, 2, v5
    s_lshl_b32 s40, s22, 10
    s_lshl_b32 s41, s49, 3
    s_add_u32 s40, s40, s41
    buffer_store_dword v8, v5, s[32:35], s40 offen
    L_k4_end:
    s_endpgm
    """)
    return k
```

```python
import os
from fw import *
from layout import *
from k1 import bf16r, LOG2E

def gen_k5():
    NW = 12
    STG = 36864
    NST = 18
    AUX = 4 * STG
    k = Kern("ffn1_kernel", 256, NW * 64, 4 * STG + 12288, 168)
    DM = [0, 1, 2]
    AT = [3, 4]; AW = [5, 6]; LN16 = 7
    C1 = 8; C2 = 12
    W = 16; T = [40, 56]; ACC = 72
    def acc(wf, tf): return ACC + 4 * (wf * 4 + tf)
    RA, RB = [int(x) for x in os.environ.get("K5_ROT", "0,0").split(",")]
    k("""
    s_load_dwordx4 s[8:11], s[0:1], 48
    s_load_dwordx2 s[20:21], s[0:1], 104
    v_and_b32 v1, 63, v0
    v_lshrrev_b32 v2, 6, v0
    v_lshlrev_b32 v7, 4, v1
    v_readfirstlane_b32 s3, v2
    s_cmp_ge_u32 s2, 256
    s_cbranch_scc1 L_k5_end
    s_and_b32 s22, s2, 7
    s_lshl_b32 s22, s22, 2
    s_lshr_b32 s23, s2, 3
    s_and_b32 s24, s23, 3
    s_add_u32 s22, s22, s24
    s_lshr_b32 s23, s23, 2
    s_and_b32 s24, s3, 3
    s_lshr_b32 s25, s3, 2
    s_lshl_b32 s26, s23, 8
    s_mul_i32 s27, s22, 144
    v_and_b32 v160, 15, v1
    v_lshrrev_b32 v161, 4, v1
    s_waitcnt lgkmcnt(0)
    """)
    k(f"""
    s_cmp_ge_u32 s3, 3
    s_cbranch_scc1 L_k5_noaux
    s_mov_b32 s28, {ST2}
    s_mov_b32 s30, {ST2_SZ}
    s_cmp_eq_u32 s3, 2
    s_cselect_b32 s28, {CS}, s28
    s_cselect_b32 s30, {CS_SZ}, s30
    s_add_u32 s28, s20, s28
    s_addc_u32 s29, s21, 0
    s_mov_b32 s31, 0x20000
    s_lshl_b32 s40, s26, 5
    s_lshl_b32 s41, s3, 12
    s_add_u32 s40, s40, s41
    s_lshl_b32 s42, s27, 2
    s_movk_i32 s43, 1024
    s_cmp_eq_u32 s3, 2
    s_cselect_b32 s40, s42, s40
    s_cselect_b32 s43, {F*4}, s43
    s_add_u32 s41, s41, {AUX}
    """)
    for i in range(4):
        k(f"s_add_u32 m0, s41, {1024*i}\ns_nop 0\nbuffer_load_dwordx4 v7, s[28:31], s40 offen lds\ns_add_u32 s40, s40, s43")
    k("L_k5_noaux:")
    for q in range(3):
        sr = 44 + 4 * q
        la, lb = k.label("dmaw"), k.label("dmad")
        dst = (166, 159, 2)[q]
        k(f"""
        s_mul_i32 s66, s3, 3
        s_add_u32 s66, s66, {q}
        s_lshl_b32 s{62+q}, s66, 10
        s_mov_b32 s{sr+3}, 0x20000
        s_cmp_ge_u32 s66, 16
        s_cbranch_scc1 {la}
        s_add_u32 s{sr}, s20, {X1P}
        s_addc_u32 s{sr+1}, s21, 0
        s_mov_b32 s{sr+2}, {X1P_SZ}
        s_lshl_b32 s{56+q}, s23, 14
        s_add_u32 s{56+q}, s{56+q}, s{62+q}
        s_mov_b32 s{59+q}, {8*16384}
        v_lshlrev_b32 v{dst}, 4, v1
        s_branch {lb}
        {la}:
        s_cmp_ge_u32 s66, 26
        s_cselect_b32 s{sr}, s10, s8
        s_cselect_b32 s{sr+1}, s11, s9
        s_cselect_b32 s67, 26, 16
        s_mov_b32 s{sr+2}, 5308416
        s_lshl_b32 s{56+q}, s27, 1
        s_mov_b32 s{59+q}, {32*9216}
        s_sub_u32 s67, s66, s67
        s_lshl_b32 s67, s67, 6
        v_add_u32 v164, s67, v1
        v_mul_u32_u24 v165, 863, v164
        v_lshrrev_b32 v165, 17, v165
        v_mul_u32_u24 v167, 152, v165
        v_sub_u32 v164, v164, v167
        v_min_u32 v164, 143, v164
        v_min_u32 v165, 3, v165
        v_mul_u32_u24 v167, 3641, v164
        v_lshrrev_b32 v167, 16, v167
        v_lshl_add_u32 v165, v165, 3, v167
        v_mul_u32_u24 v167, 18, v167
        v_sub_u32 v164, v164, v167
        v_mul_u32_u24 v165, 9216, v165
        v_lshl_add_u32 v{dst}, v164, 4, v165
        {lb}:
        """)
    k("""
    v_bfe_u32 v158, v1, 2, 2
    v_and_b32 v157, 3, v1
    v_mov_b32 v0, v166
    v_mov_b32 v1, v159
    s_mov_b32 s68, 0
    """)
    def dma1(q):
        k(f"s_add_u32 m0, s{62+q}, s68")
        k("s_nop 0")
        k(f"buffer_load_dwordx4 v{DM[q]}, s[{44+4*q}:{47+4*q}], s{56+q} offen lds")
        k(f"s_add_u32 s{56+q}, s{56+q}, s{59+q}")
        if q == 2:
            k(f"s_add_u32 s68, s68, {STG}\ns_cmp_eq_u32 s68, {4*STG}\ns_cselect_b32 s68, 0, s68")
    for q in range(3): dma1(q)
    k.stamp(3)
    k(f"""
    v_lshrrev_b32 v164, 2, v160
    v_sub_u32 v164, 4, v164
    v_xor_b32 v164, v164, v161
    v_and_b32 v164, 3, v164
    s_lshl_b32 s66, s24, 12
    v_lshlrev_b32 v{AT[0]}, 6, v160
    v_lshl_add_u32 v{AT[0]}, v164, 4, v{AT[0]}
    v_add_u32 v{AT[0]}, s66, v{AT[0]}
    v_add_u32 v{AT[1]}, {2*STG}, v{AT[0]}
    v_lshl_add_u32 v164, v161, 3, v158
    v_mul_u32_u24 v164, 288, v164
    v_lshl_add_u32 v164, v161, 7, v164
    v_lshl_add_u32 v164, v157, 3, v164
    s_mul_i32 s66, s25, 96
    v_add_u32 v{AW[0]}, s66, v164
    v_add_u32 v{AW[1]}, {2*STG}, v{AW[0]}
    s_lshl_b32 s66, s24, 11
    s_add_u32 s66, s66, {AUX}
    v_lshlrev_b32 v162, 5, v160
    v_add_u32 v162, s66, v162
    s_mul_i32 s66, s25, 192
    s_add_u32 s66, s66, {AUX + 8192}
    v_lshlrev_b32 v163, 4, v161
    v_add_u32 v163, s66, v163
    s_waitcnt vmcnt(3)
    s_barrier
    """)
    for tf in range(4):
        k(f"ds_read_b128 v[{T[0]+8*tf}:{T[0]+8*tf+3}], v162 offset:{512*tf}")
        k(f"ds_read_b128 v[{T[0]+8*tf+4}:{T[0]+8*tf+7}], v162 offset:{512*tf+16}")
    k("s_waitcnt lgkmcnt(0)")
    for mat in range(2):
        for vec in range(2):
            for ft in range(3):
                wf = 2 * ft + mat
                dst = (W + 4 * wf) if vec == 0 else acc(wf, 0)
                k(f"ds_read_b128 v[{dst}:{dst+3}], v163 offset:{(2*mat+vec)*1024 + 64*ft}")
    NMU, SD = T[1] + 8, T[1] + 12
    steps = [
        "v_add_f32 v{b}, v{b}, v{b2}", "v_add_f32 v{b4}, v{b4}, v{b6}", "v_add_f32 v{b1}, v{b1}, v{b3}", "v_add_f32 v{b5}, v{b5}, v{b7}",
        "v_add_f32 v{b}, v{b}, v{b4}", "v_add_f32 v{b1}, v{b1}, v{b5}",
        "v_mul_f32 v{b}, " + fhex(-1/576) + ", v{b}", "v_mul_f32 v{b1}, " + fhex(1/576) + ", v{b1}",
        "v_fma_f32 v{b1}, -v{b}, v{b}, v{b1}", "v_max_f32 v{b1}, 0, v{b1}",
        "v_cvt_pk_bf16_f32 v{b2}, v{b}, v{b}", "v_cvt_pk_bf16_f32 v{b1}, v{b1}, v{b1}",
        "v_lshlrev_b32 v{m}, 16, v{b2}", "v_lshlrev_b32 v{b1}, 16, v{b1}",
        "v_add_f32 v{b1}, " + fhex(1e-5) + ", v{b1}", "v_cvt_pk_bf16_f32 v{b1}, v{b1}, v{b1}", "v_lshlrev_b32 v{b1}, 16, v{b1}",
        "v_sqrt_f32 v{b1}, v{b1}", "v_cvt_pk_bf16_f32 v{b1}, v{b1}, v{b1}", "v_lshlrev_b32 v{sd}, 16, v{b1}",
        "v_rcp_f32 v{b3}, v{sd}", "v_mul_f32 v{c1}, " + fhex(-LOG2E) + ", v{b3}", "v_mul_f32 v{c2}, v{b3}, v{b3}"]
    for stp in steps:
        for tf in range(4):
            b = T[0] + 8 * tf
            k(stp.format(b=b, b1=b+1, b2=b+2, b3=b+3, b4=b+4, b5=b+5, b6=b+6, b7=b+7, m=160+tf, sd=164+tf, c1=C1+tf, c2=C2+tf))
    for i in range(4):
        k(f"v_mov_b32 v{NMU+i}, v{160+i}\nv_mov_b32 v{SD+i}, v{164+i}")
    k("s_waitcnt vmcnt(0) lgkmcnt(0)\ns_barrier")
    for wf in range(6):
        dma1(wf % 3)
        for tf in (3, 2, 1, 0):
            for r in range(4):
                d = acc(wf, tf) + r
                k(f"v_mul_f32 v{d}, v{acc(wf,0)+r}, v{SD+tf}")
                k(f"v_fmac_f32 v{d}, v{NMU+tf}, v{W+4*wf+r}")
    ds = DSTrack(k)
    def rdT(p):
        a = AT[p >> 1]; o = (p & 1) * STG
        for tf in range(4):
            b = T[p % 2] + 4 * tf
            ds.read(f"ds_read_b128 v[{b}:{b+3}], v{a} offset:{o + 1024*tf}", b, 4)
    def rdW(p, wf):
        a = AW[p >> 1]; o = (p & 1) * STG
        ft, mat = wf // 2, wf % 2
        for j in range(2):
            b = W + 4 * wf + 2 * j
            ds.read(f"ds_read_b64_tr_b16 v[{b}:{b+1}], v{a} offset:{o + 16384 + mat*10240 + j*1152 + ft*32}", b, 2)
    k.stamp(0)
    rdT(0)
    for wf in range(6): rdW(0, wf)
    head = [min(x) for x in ds.fifo]
    MID = int(os.environ.get("K5_MID", "1"))
    def stage(p, sync, dma, nxt):
        for wf in range(6):
            if wf == MID:
                if sync is not None: k(f"s_waitcnt vmcnt({sync})\ns_barrier")
                if nxt:
                    rdT(p + 1)
                    for w2 in range(MID): rdW(p + 1, w2)
            ds.need((W + 4 * wf, 4), (T[p % 2], 16))
            for tf in range(4):
                a = acc(wf, tf)
                t = T[p % 2] + 4 * tf
                k(f"v_mfma_f32_16x16x32_bf16 v[{a}:{a+3}], v[{W+4*wf}:{W+4*wf+3}], v[{t}:{t+3}], v[{a}:{a+3}]")
            if nxt and wf >= MID: rdW(p + 1, wf)
            if dma and wf >= 3: dma1(wf - 3)
    def swap():
        k(f"v_swap_b32 v{AT[0]}, v{AT[1]}\nv_swap_b32 v{AW[0]}, v{AW[1]}")
    k("s_mov_b32 s40, 7\n.p2align 6\nL_k5_loop:")
    stage(0, 3, True, True)
    stage(1, 3, True, True)
    swap()
    assert [min(x) for x in ds.fifo] == head
    k("s_sub_u32 s40, s40, 1\ns_cmp_lg_u32 s40, 0\ns_cbranch_scc1 L_k5_loop")
    stage(0, 3, True, True)
    stage(1, 0, False, True)
    swap()
    stage(0, None, False, True)
    stage(1, None, False, False)
    k.nop(8)
    k.stamp(2)
    k.srd(28, 20, FLG_SZ, FLG)
    k(f"""
    s_cmp_ge_u32 s2, 64
    s_cbranch_scc1 L_k5_nf
    s_cmp_lg_u32 s3, 0
    s_cbranch_scc1 L_k5_nf
    v_mov_b32 v16, 0
    v_mov_b32 v17, 0
    v_mov_b32 v18, 0
    v_mov_b32 v19, 0
    s_lshl_b32 s40, s2, 8
    s_mov_b64 exec, 1
    buffer_store_dwordx4 v[16:19], v16, s[28:31], s40 offen sc1
    s_mov_b64 exec, -1
    s_nop 1
    L_k5_nf:
    """)
    k.srd(28, 20, ACT_SZ, ACT)
    k(f"""
    s_lshl_b32 s41, s23, 3
    s_lshl_b32 s42, s24, 1
    s_add_u32 s41, s41, s42
    s_lshl_b32 s41, s41, 12
    s_mul_i32 s42, s22, 9
    s_mul_i32 s43, s25, 3
    s_add_u32 s42, s42, s43
    """)
    E = 16
    ST = os.environ.get('K5_ST', ' sc1')
    for ft in range(3):
        k(f"""
        s_add_u32 s43, s42, {ft}
        s_lshr_b32 s44, s43, 2
        s_lshl_b32 s44, s44, 18
        s_and_b32 s43, s43, 3
        s_lshl_b32 s43, s43, 10
        s_add_u32 s44, s44, s43
        s_add_u32 s44, s44, s41
        s_add_u32 s45, s44, 4096
        """)
        for pr in range(2):
            o = E + 32 + 4 * ((ft * 2 + pr) % 4)
            for half in range(2):
                tf = 2 * pr + half
                a, b = acc(2 * ft, tf), acc(2 * ft + 1, tf)
                e = E + 8 * half
                for r in range(4): k(f"v_mul_f32 v{e+r}, v{C1+tf}, v{a+r}")
                for r in range(4): k(f"v_exp_f32 v{e+r}, v{e+r}")
                for r in range(4): k(f"v_mul_f32 v{e+4+r}, v{a+r}, v{b+r}")
                for r in range(4): k(f"v_add_f32 v{e+r}, 1.0, v{e+r}")
                for r in range(4): k(f"v_rcp_f32 v{e+r}, v{e+r}")
                for r in range(4): k(f"v_mul_f32 v{e+4+r}, v{C2+tf}, v{e+4+r}")
                for r in range(4): k(f"v_mul_f32 v{e+4+r}, v{e+4+r}, v{e+r}")
                k(f"v_cvt_pk_bf16_f32 v{o+2*half}, v{e+4}, v{e+5}")
                k(f"v_cvt_pk_bf16_f32 v{o+2*half+1}, v{e+6}, v{e+7}")
            k.nop(2)
            k(f"v_permlane16_swap_b32 v{o}, v{o+2}")
            k(f"v_permlane16_swap_b32 v{o+1}, v{o+3}")
            k(f"buffer_store_dwordx4 v[{o}:{o+3}], v{LN16}, s[28:31], s{44+pr} offen{ST}")
    k("L_k5_end:\ns_endpgm")
    return k
```

```python
import os
from fw import *
from layout import *

def gen_k6():
    NW = 8
    STG = 36864
    NST = 18
    PF = int(os.environ.get("K6_PF", "0"))
    k = Kern("ffn2_kernel", 256, (NW + 4) * 64, 4 * STG, 160)
    DM = [0, 1, 2, 3, 4]
    AT = [5, 6]; AW = [7, 8]
    W = 12; T = [48, 56]; ACC = 64
    def acc(wf, tf): return ACC + 4 * (wf * 2 + tf)
    TMP = 136
    k(f"""
    s_load_dwordx2 s[8:9], s[0:1], 64
    s_load_dwordx4 s[12:15], s[0:1], 88
    s_load_dwordx2 s[20:21], s[0:1], 104
    v_and_b32 v{TMP}, 63, v0
    v_lshrrev_b32 v2, 6, v0
    s_nop 0
    v_readfirstlane_b32 s3, v2
    s_cmp_ge_u32 s2, 256
    s_cbranch_scc1 L_k6_end
    s_and_b32 s22, s2, 7
    s_lshr_b32 s23, s2, 3
    s_lshr_b32 s24, s22, 1
    s_and_b32 s22, s22, 1
    s_lshl_b32 s22, s22, 3
    s_and_b32 s25, s23, 7
    s_add_u32 s22, s22, s25
    s_lshr_b32 s23, s23, 3
    s_and_b32 s25, s3, 3
    s_lshr_b32 s26, s3, 2
    v_and_b32 v{TMP+1}, 15, v{TMP}
    v_lshrrev_b32 v{TMP+2}, 4, v{TMP}
    s_waitcnt lgkmcnt(0)
    """)
    L, Tt, G = TMP, TMP + 1, TMP + 2
    X, Y, Z = TMP + 3, TMP + 4, TMP + 5
    def wslot(dst, base_sreg, maxblk):
        k(f"""
        v_add_u32 v{X}, {base_sreg}, v{L}
        v_mul_u32_u24 v{Y}, 863, v{X}
        v_lshrrev_b32 v{Y}, 17, v{Y}
        v_mul_u32_u24 v{Z}, 152, v{Y}
        v_sub_u32 v{X}, v{X}, v{Z}
        v_min_u32 v{X}, 143, v{X}
        v_min_u32 v{Y}, {maxblk}, v{Y}
        v_mul_u32_u24 v{Z}, 3641, v{X}
        v_lshrrev_b32 v{Z}, 16, v{Z}
        v_lshl_add_u32 v{Y}, v{Y}, 3, v{Z}
        v_mul_u32_u24 v{Z}, 18, v{Z}
        v_sub_u32 v{X}, v{X}, v{Z}
        v_mul_u32_u24 v{Y}, 1152, v{Y}
        v_lshl_add_u32 v{dst}, v{X}, 4, v{Y}
        """)
    NBAR_TAIL = 2
    ADV = f"s_add_u32 s71, s71, {STG}\ns_cmp_eq_u32 s71, {4*STG}\ns_cselect_b32 s71, 0, s71"
    k("s_cmp_ge_u32 s3, 8\ns_cbranch_scc0 L_k6_main")
    k("s_cmp_ge_u32 s3, 10\ns_cbranch_scc1 L_k6_wl")
    k.srd(40, 20, ACT_SZ, ACT)
    k(f"""
    s_sub_u32 s76, s3, 8
    s_lshl_b32 s60, s22, 2
    s_lshl_b32 s77, s76, 1
    s_add_u32 s60, s60, s77
    s_lshl_b32 s60, s60, 12
    s_mul_i32 s77, s24, {18 << 18}
    s_add_u32 s60, s60, s77
    s_add_u32 s61, s60, 4096
    s_lshl_b32 s70, s76, 13
    v_lshlrev_b32 v0, 4, v{L}
    """)
    def dma_a():
        for h in range(2):
            k(f"s_add_u32 s79, s70, s71")
            k(f"s_add_u32 m0, s79, {h*4096}")
            k("s_nop 0")
            for q in range(4):
                k(f"buffer_load_dwordx4 v0, s[40:43], s{60+h} offen offset:{1024*q} lds")
            k(f"s_add_u32 s{60+h}, s{60+h}, {1 << 18}")
        k(ADV)
    def loader(dma, n):
        lab = k.label("ld")
        k("s_mov_b32 s71, 0")
        dma(); dma(); dma()
        k(f"s_waitcnt vmcnt({2*n})\ns_barrier\ns_mov_b32 s72, {NST-3}")
        k(f"{lab}:\ns_waitcnt vmcnt({n})\ns_barrier")
        dma()
        k(f"s_sub_u32 s72, s72, 1\ns_cmp_lg_u32 s72, 0\ns_cbranch_scc1 {lab}")
        k("s_waitcnt vmcnt(0)\ns_barrier")
        for i in range(NBAR_TAIL): k("s_barrier")
        k("s_branch L_k6_tail")
    loader(dma_a, 8)
    k("L_k6_wl:")
    k.srd(40, 8, 5308416)
    k(f"""
    s_mul_i32 s60, s24, {1152*1152}
    s_mul_i32 s77, s23, 288
    s_add_u32 s60, s60, s77
    s_sub_u32 s76, s3, 10
    s_mul_i32 s76, s76, 640
    s_lshl_b32 s70, s76, 4
    s_add_u32 s70, s70, 16384
    """)
    for q in range(10):
        wslot(q, "s76", 7)
        k("s_add_u32 s76, s76, 64")
    def dma_w():
        k("s_add_u32 s79, s70, s71")
        for q in range(10):
            k(f"s_add_u32 m0, s79, {q*1024}")
            k("s_nop 0")
            k(f"buffer_load_dwordx4 v{q}, s[40:43], s60 offen lds")
        k(f"s_add_u32 s60, s60, {64*1152}")
        k(ADV)
    loader(dma_w, 10)
    k("L_k6_main:")
    k(f"""
    v_lshrrev_b32 v{X}, 1, v{G}
    v_lshlrev_b32 v{X}, 10, v{X}
    v_and_b32 v{Y}, 1, v{G}
    v_lshl_add_u32 v{X}, v{Y}, 9, v{X}
    v_lshl_add_u32 v{X}, v{Tt}, 4, v{X}
    s_lshl_b32 s76, s25, 12
    s_lshl_b32 s77, s26, 11
    s_add_u32 s76, s76, s77
    v_add_u32 v{AT[0]}, s76, v{X}
    v_add_u32 v{AT[1]}, {2*STG}, v{AT[0]}
    v_bfe_u32 v{X}, v{L}, 2, 2
    v_lshl_add_u32 v{X}, v{G}, 3, v{X}
    v_mul_u32_u24 v{X}, 288, v{X}
    v_lshl_add_u32 v{X}, v{G}, 7, v{X}
    v_and_b32 v{Y}, 3, v{L}
    v_lshl_add_u32 v{X}, v{Y}, 3, v{X}
    s_mul_i32 s76, s26, {32*288+512}
    v_add_u32 v{AW[0]}, s76, v{X}
    v_add_u32 v{AW[1]}, {2*STG}, v{AW[0]}
    """)
    ds = DSTrack(k)
    def rdT(p):
        a = AT[p >> 1]; o = (p & 1) * STG
        for tf in range(2):
            b = T[p % 2] + 4 * tf
            ds.read(f"ds_read_b128 v[{b}:{b+3}], v{a} offset:{o + 256*tf}", b, 4)
    def rdW(p, wf):
        a = AW[p >> 1]; o = (p & 1) * STG
        for j in range(2):
            b = W + 4 * wf + 2 * j
            ds.read(f"ds_read_b64_tr_b16 v[{b}:{b+1}], v{a} offset:{o + 16384 + j*1152 + wf*32}", b, 2)
    for i in range(72): k(f"v_mov_b32 v{ACC+i}, 0")
    k("s_barrier")
    k.stamp(0)
    rdT(0)
    for wf in range(9): rdW(0, wf)
    MID = int(os.environ.get("K6_MID", "6"))
    def stage(p, sync, nxt):
        for wf in range(9):
            if wf == MID:
                if sync: k("s_barrier")
                if nxt:
                    rdT(p + 1)
                    for w2 in range(MID): rdW(p + 1, w2)
            ds.need((W + 4 * wf, 4), (T[p % 2], 8))
            for tf in range(2):
                a = acc(wf, tf)
                t = T[p % 2] + 4 * tf
                k(f"v_mfma_f32_16x16x32_bf16 v[{a}:{a+3}], v[{W+4*wf}:{W+4*wf+3}], v[{t}:{t+3}], v[{a}:{a+3}]")
            if nxt and wf >= MID: rdW(p + 1, wf)
    def swap():
        k(f"v_swap_b32 v{AT[0]}, v{AT[1]}\nv_swap_b32 v{AW[0]}, v{AW[1]}")
    head = list(ds.fifo)
    k("s_mov_b32 s40, 7\n.p2align 6\nL_k6_loop:")
    stage(0, True, True)
    stage(1, True, True)
    swap()
    assert [min(x) for x in ds.fifo] == [min(x) for x in head][-len(ds.fifo):]
    k("s_sub_u32 s40, s40, 1\ns_cmp_lg_u32 s40, 0\ns_cbranch_scc1 L_k6_loop")
    stage(0, True, True)
    stage(1, True, True)
    swap()
    stage(0, False, True)
    stage(1, False, False)
    k.nop(8)
    k.stamp(1)
    k(f"""
    s_barrier
    s_mul_i32 s76, s25, {18*1024}
    v_lshlrev_b32 v{Y}, 4, v{L}
    v_add_u32 v{X}, s76, v{Y}
    s_lshl_b32 s40, s24, 4
    s_add_u32 s40, s40, s22
    s_lshl_b32 s40, s40, 2
    s_add_u32 s40, s40, s23
    s_lshl_b32 s40, s40, 2
    s_add_u32 s40, s40, s25
    s_mul_i32 s40, s40, {9*1024}
    """)
    k.srd(28, 20, PART_SZ, PART)
    ST = os.environ.get('K6_ST', ' sc1')
    k("s_cmp_eq_u32 s26, 1\ns_cbranch_scc1 L_k6_h1")
    for kh in range(2):
        keep = range(0, 5) if kh == 0 else range(5, 9)
        give = range(5, 9) if kh == 0 else range(0, 5)
        if kh == 1: k("L_k6_h1:\ns_add_u32 s40, s40, 5120")
        for wf in give:
            for tf in range(2):
                a = acc(wf, tf)
                k(f"ds_write_b128 v{X}, v[{a}:{a+3}] offset:{(wf*2+tf)*1024}")
        k("s_waitcnt lgkmcnt(0)\ns_barrier")
        n = 0
        for wf in keep:
            for tf in range(2):
                k(f"ds_read_b128 v[{W+4*n}:{W+4*n+3}], v{X} offset:{(wf*2+tf)*1024}")
                n += 1
        tot = n
        n = 0
        for i, wf in enumerate(keep):
            a0 = acc(wf, 0)
            for tf in range(2):
                a = acc(wf, tf)
                k(f"s_waitcnt lgkmcnt({tot-n-1})")
                for r in range(4):
                    k(f"v_add_f32 v{a+r}, v{a+r}, v{W+4*n+r}")
                n += 1
            for d in range(4):
                k(f"v_cvt_pk_bf16_f32 v{a0+d}, v{a0+2*d}, v{a0+2*d+1}")
            k(f"buffer_store_dwordx4 v[{a0}:{a0+3}], v{Y}, s[28:31], s40 offen offset:{(i%4)*1024}{ST}")
            if i % 4 == 3: k("s_add_u32 s40, s40, 4096")
        k.stamp(2)
        if kh == 0: k("s_branch L_k6_tail")
    k("L_k6_tail:")
    k.srd(52, 12, S * 1152)
    k.srd(28, 20, X1_SZ, X1)
    k.srd(32, 20, 2304, MOD + 5 * 2304)
    k.srd(36, 20, PART_SZ, PART)
    k.srd(44, 20, FLG_SZ, FLG)
    k(f"""
    s_waitcnt vmcnt(0)
    s_barrier
    s_lshl_b32 s40, s22, 2
    s_add_u32 s40, s40, s23
    s_lshl_b32 s48, s40, 8
    s_cmp_lg_u32 s3, 0
    s_cbranch_scc1 L_k6_w
    v_mov_b32 v0, 0
    v_mov_b32 v1, 1
    s_lshl_b32 s49, s24, 2
    v_mov_b32 v2, s49
    s_mov_b64 exec, 1
    buffer_store_dword v1, v2, s[44:47], s48 offen sc1
    s_mov_b64 exec, -1
    L_k6_w:
    s_lshl_b32 s40, s40, 2
    s_add_u32 s40, s40, s24
    s_mul_i32 s40, s40, 9
    s_add_u32 s40, s40, s3
    s_lshl_b32 s40, s40, 10
    s_lshl_b32 s41, s22, 2
    s_add_u32 s41, s41, s24
    s_mul_i32 s41, s41, 36864
    s_mul_i32 s42, s23, 144
    s_lshl_b32 s43, s3, 4
    s_add_u32 s42, s42, s43
    s_lshl_b32 s43, s42, 1
    s_add_u32 s41, s41, s43
    s_add_u32 s43, s41, 18432
    s_lshl_b32 s42, s42, 2
    v_lshlrev_b32 v4, 4, v{L}
    v_mul_u32_u24 v5, 1152, v{Tt}
    v_lshl_add_u32 v5, v{G}, 3, v5
    v_lshlrev_b32 v6, 4, v{G}
    s_cmp_ge_u32 s3, 9
    s_cbranch_scc1 L_k6_nox
    buffer_load_dwordx2 v[40:41], v5, s[28:31], s41 offen
    buffer_load_dwordx2 v[42:43], v5, s[28:31], s43 offen
    buffer_load_dwordx4 v[44:47], v6, s[32:35], s42 offen
    L_k6_nox:
    s_cmp_lg_u32 s3, 0
    s_cbranch_scc1 L_k6_go
    s_mov_b32 s49, 0
    L_k6_poll:
    buffer_load_dwordx4 v[60:63], v0, s[44:47], s48 offen sc1
    s_waitcnt vmcnt(0)
    v_add3_u32 v1, v60, v61, v62
    v_add_u32 v1, v1, v63
    s_nop 0
    v_readfirstlane_b32 s50, v1
    s_add_u32 s49, s49, 1
    s_cmp_eq_u32 s50, 4
    s_cbranch_scc1 L_k6_go
    s_sleep 2
    s_cmp_lt_u32 s49, 0x100000
    s_cbranch_scc1 L_k6_poll
    L_k6_go:
    s_barrier
    ;STAMP 3
    s_cmp_ge_u32 s3, 9
    s_cbranch_scc1 L_k6_end
    """)
    for sp in range(4):
        k(f"buffer_load_dwordx4 v[{24+4*sp}:{27+4*sp}], v4, s[36:39], s40 offen sc1")
        if sp < 3: k(f"s_add_u32 s40, s40, {S*D*2}")
    for sp in range(4):
        k(f"s_waitcnt vmcnt({3-sp})")
        for d in range(4):
            w = 24 + 4 * sp + d
            if sp == 0:
                k(f"v_lshlrev_b32 v{8+2*d}, 16, v{w}")
                k(f"v_and_b32 v{9+2*d}, 0xffff0000, v{w}")
            else:
                k(f"v_lshlrev_b32 v52, 16, v{w}")
                k(f"v_and_b32 v53, 0xffff0000, v{w}")
                k(f"v_add_f32 v{8+2*d}, v{8+2*d}, v52")
                k(f"v_add_f32 v{9+2*d}, v{9+2*d}, v53")
    for d in range(4):
        k(f"v_lshlrev_b32 v52, 16, v{40+d}")
        k(f"v_and_b32 v53, 0xffff0000, v{40+d}")
        k(f"v_fmac_f32 v52, v{44+2*(d&1)}, v{8+2*d}")
        k(f"v_fmac_f32 v53, v{45+2*(d&1)}, v{9+2*d}")
        k(f"v_cvt_pk_bf16_f32 v{56+d}, v52, v53")
    k("""
    buffer_store_dwordx2 v[56:57], v5, s[52:55], s41 offen
    buffer_store_dwordx2 v[58:59], v5, s[52:55], s43 offen
    L_k6_end:
    s_endpgm
    """)
    return k

def gen_k7():
    k = Kern("fin_kernel", 576, 256, 0, 64)
    k("""
    s_load_dwordx2 s[4:5], s[0:1], 88
    s_load_dwordx2 s[20:21], s[0:1], 104
    v_and_b32 v1, 63, v0
    v_lshrrev_b32 v2, 6, v0
    v_lshlrev_b32 v4, 4, v1
    v_readfirstlane_b32 s3, v2
    s_cmp_ge_u32 s2, 576
    s_cbranch_scc1 L_k7_end
    s_lshl_b32 s22, s2, 2
    s_add_u32 s22, s22, s3
    s_mul_i32 s23, s22, 7282
    s_lshr_b32 s23, s23, 16
    s_mul_i32 s24, s23, 9
    s_sub_u32 s24, s22, s24
    s_and_b32 s25, s23, 3
    s_lshr_b32 s26, s23, 2
    s_and_b32 s26, s26, 3
    s_lshr_b32 s27, s23, 4
    v_and_b32 v2, 15, v1
    v_lshrrev_b32 v3, 4, v1
    v_mul_u32_u24 v5, 1152, v2
    v_lshl_add_u32 v5, v3, 3, v5
    v_lshlrev_b32 v6, 4, v3
    s_lshl_b32 s40, s22, 10
    s_lshl_b32 s41, s27, 2
    s_add_u32 s41, s41, s25
    s_mul_i32 s41, s41, 36864
    s_mul_i32 s42, s26, 144
    s_lshl_b32 s43, s24, 4
    s_add_u32 s42, s42, s43
    s_lshl_b32 s43, s42, 1
    s_add_u32 s41, s41, s43
    s_add_u32 s43, s41, 18432
    s_lshl_b32 s42, s42, 2
    s_waitcnt lgkmcnt(0)
    """)
    k.stamp(0)
    k.srd(24, 4, S * 1152)
    k.srd(28, 20, X1_SZ, X1)
    k.srd(32, 20, 2304, MOD + 5 * 2304)
    k.srd(36, 20, PART_SZ, PART)
    for sp in range(4):
        k(f"buffer_load_dwordx4 v[{24+4*sp}:{27+4*sp}], v4, s[36:39], s40 offen")
        if sp < 3: k(f"s_add_u32 s40, s40, {S*D*2}")
    k("""
    buffer_load_dwordx2 v[40:41], v5, s[28:31], s41 offen
    buffer_load_dwordx2 v[42:43], v5, s[28:31], s43 offen
    buffer_load_dwordx4 v[44:47], v6, s[32:35], s42 offen
    """)
    for sp in range(4):
        k(f"s_waitcnt vmcnt({6-sp})")
        if sp == 0: k.stamp(1)
        for d in range(4):
            w = 24 + 4 * sp + d
            if sp == 0:
                k(f"v_lshlrev_b32 v{8+2*d}, 16, v{w}")
                k(f"v_and_b32 v{9+2*d}, 0xffff0000, v{w}")
            else:
                k(f"v_lshlrev_b32 v52, 16, v{w}")
                k(f"v_and_b32 v53, 0xffff0000, v{w}")
                k(f"v_add_f32 v{8+2*d}, v{8+2*d}, v52")
                k(f"v_add_f32 v{9+2*d}, v{9+2*d}, v53")
    k("s_waitcnt vmcnt(0)")
    k.stamp(2)
    for d in range(4):
        k(f"v_lshlrev_b32 v52, 16, v{40+d}")
        k(f"v_and_b32 v53, 0xffff0000, v{40+d}")
        k(f"v_fmac_f32 v52, v{44+2*(d&1)}, v{8+2*d}")
        k(f"v_fmac_f32 v53, v{45+2*(d&1)}, v{9+2*d}")
        k(f"v_cvt_pk_bf16_f32 v{56+d}, v52, v53")
    k("""
    buffer_store_dwordx2 v[56:57], v5, s[24:27], s41 offen
    buffer_store_dwordx2 v[58:59], v5, s[24:27], s43 offen
    L_k7_end:
    s_endpgm
    """)
    return k
```

```python
import os
from fw import *
from layout import *
from k1 import bf16r, LOG2E
from k2 import small_gemm, gemm_addr, wave_max, QSCALE, gen_k2

def gen_k12():
    HT = 64 * 1152
    AUX = 5 * 18432
    k = Kern("qkv_kernel", 256, 576, AUX + 7168, 168)
    XB, STB, MB, TMP = 80, 112, 128, 144
    ACC = 112; PK = 80
    k(f"""
    s_memrealtime s[68:69]
    s_load_dwordx8 s[4:11], s[0:1], 0
    s_load_dwordx2 s[12:13], s[0:1], 32
    s_load_dwordx4 s[16:19], s[0:1], 72
    s_load_dwordx4 s[56:59], s[0:1], 96
    v_and_b32 v1, 63, v0
    v_lshrrev_b32 v2, 6, v0
    s_nop 0
    v_readfirstlane_b32 s3, v2
    s_nop 3
    s_add_u32 s3, s3, 5
    s_cmp_ge_u32 s3, 9
    s_cselect_b32 s22, 9, 0
    s_sub_u32 s3, s3, s22
    s_cmp_ge_u32 s2, 256
    s_cbranch_scc1 L_k2_end
    s_movk_i32 s22, 911
    v_mul_lo_u32 v2, v0, s22
    v_lshrrev_b32 v2, 16, v2
    v_mul_u32_u24 v3, 72, v2
    v_sub_u32 v3, v0, v3
    s_and_b32 s22, s2, 7
    s_lshl_b32 s22, s22, 2
    s_lshr_b32 s23, s2, 3
    s_and_b32 s23, s23, 3
    s_add_u32 s22, s22, s23
    s_lshr_b32 s23, s2, 5
    s_mul_i32 s23, s23, 5
    s_add_u32 s23, s23, s3
    v_mul_u32_u24 v4, 1152, v2
    v_lshl_add_u32 v4, v3, 4, v4
    s_mul_i32 s40, s22, {HT}
    s_waitcnt lgkmcnt(0)
    s_mov_b32 s20, s58
    s_mov_b32 s21, s59
    """)
    k.srd(24, 4, S * 1152)
    k.srd(32, 20, MOD_SZ, MOD)
    k.srd(60, 56, 256)
    k.srd(72, 20, GO_SZ, GO)
    k("s_cmp_ge_u32 s3, 5\ns_cbranch_scc1 L_k2_h")
    k(f"""
    s_and_b32 s42, s23, 1
    s_cmp_ge_u32 s23, 38
    s_cselect_b32 s36, s10, s8
    s_cselect_b32 s37, s11, s9
    s_cmp_ge_u32 s23, 36
    s_cselect_b32 s36, s36, s6
    s_cselect_b32 s37, s37, s7
    s_mov_b32 s38, 663552
    s_cselect_b32 s38, 20736, s38
    s_mov_b32 s39, 0x20000
    s_movk_i32 s41, 1152
    s_cselect_b32 s41, 36, s41
    s_cselect_b32 s42, s42, s23
    s_lshl_b32 s42, s42, 5
    s_lshl_b32 s43, s41, 5
    v_lshrrev_b32 v5, 1, v1
    v_mul_lo_u32 v5, v5, s41
    v_and_b32 v6, 1, v1
    v_lshl_add_u32 v5, v6, 4, v5
    s_mul_i32 s44, s3, 18432
    """)
    k("s_barrier")
    for ks in range(18):
        k(f"s_add_u32 m0, s44, {1024*ks}\ns_nop 0\nbuffer_load_dwordx4 v5, s[36:39], s42 offen lds\ns_add_u32 s42, s42, s43")
    k(f"""
    v_and_b32 v6, 7, v1
    v_lshrrev_b32 v7, 3, v1
    v_mul_u32_u24 v5, 1152, v7
    v_lshl_add_u32 v5, v6, 4, v5
    s_mul_i32 s41, s3, 9216
    s_add_u32 s41, s41, s40
    s_min_u32 s42, s3, 2
    s_mul_i32 s42, s42, 9216
    s_add_u32 s42, s42, s40
    s_add_u32 s42, s42, {5*9216}
    """)
    for ps in range(2):
        for j in range(9):
            k(f"buffer_load_dwordx4 v[{8+36*ps+4*j}:{11+36*ps+4*j}], v5, s[24:27], s{41+ps} offen offset:{128*j}")
    for p in range(8):
        k(f"buffer_load_dwordx4 v[{XB+4*p}:{XB+3+4*p}], v4, s[24:27], s40 offen")
        if p < 7: k("s_add_u32 s40, s40, 9216")
    k("s_barrier")
    k(f"v_mov_b32 v{TMP}, 0x3f803f80")
    for i in range(8): k(f"v_mov_b32 v{MB+i}, 0")
    for ps in range(2):
        for j in range(9):
            k(f"s_waitcnt vmcnt({8 + 17 - 9*ps - j})")
            for d in range(4):
                x = 8 + 36 * ps + 4 * j + d
                k(f"v_dot2c_f32_bf16 v{MB+4*ps+(d&1)}, v{x}, v{TMP}")
                k(f"v_dot2c_f32_bf16 v{MB+4*ps+2+(d&1)}, v{x}, v{x}")
    k.nop(3)
    for ps in range(2):
        k(f"v_add_f32 v{MB+4*ps}, v{MB+4*ps}, v{MB+4*ps+1}\nv_add_f32 v{MB+4*ps+2}, v{MB+4*ps+2}, v{MB+4*ps+3}")
    for mode in ("quad_perm:[1,0,3,2]", "quad_perm:[2,3,0,1]", "row_half_mirror"):
        k.nop(1)
        for r in (MB, MB + 2, MB + 4, MB + 6):
            k(f"v_add_f32_dpp v{r}, v{r}, v{r} {mode} row_mask:0xf bank_mask:0xf")
    for ps in range(2):
        m, v_ = MB + 4 * ps, MB + 4 * ps + 2
        k(f"v_mul_f32 v{m}, {fhex(1.0/576)}, v{m}\nv_mul_f32 v{v_}, {fhex(1.0/576)}, v{v_}")
        k(f"v_fma_f32 v{v_}, -v{m}, v{m}, v{v_}\nv_max_f32 v{v_}, 0, v{v_}")
        bf16r(k, v_, v_)
        k(f"v_add_f32 v{v_}, {fhex(1e-5)}, v{v_}")
        bf16r(k, v_, v_)
        k(f"v_sqrt_f32 v{v_}, v{v_}\ns_nop 0")
        bf16r(k, v_, v_)
        k(f"v_rcp_f32 v{v_}, v{v_}")
        bf16r(k, m, m)
        k(f"v_mul_f32 v{v_+1}, v{m}, v{v_}\nv_sub_f32 v{v_+1}, 0, v{v_+1}")
    k(f"""
    s_lshl_b32 s41, s3, 6
    s_add_u32 s41, s41, {AUX+5120}
    v_lshlrev_b32 v5, 3, v7
    v_add_u32 v5, s41, v5
    s_min_u32 s42, s3, 2
    s_lshl_b32 s42, s42, 6
    s_add_u32 s42, s42, {AUX+5120+320}
    v_lshlrev_b32 v7, 3, v7
    v_add_u32 v7, s42, v7
    ds_write_b64 v5, v[{MB+2}:{MB+3}]
    ds_write_b64 v7, v[{MB+6}:{MB+7}]
    v_lshrrev_b32 v6, 4, v1
    v_bfe_u32 v5, v1, 2, 2
    v_lshl_add_u32 v5, v6, 3, v5
    v_lshlrev_b32 v5, 5, v5
    v_and_b32 v6, 3, v1
    v_lshl_add_u32 v5, v6, 3, v5
    v_add_u32 v5, s44, v5
    """)
    for ks in range(18):
        k(f"ds_read_b64_tr_b16 v[{8+4*ks}:{9+4*ks}], v5 offset:{1024*ks}")
        k(f"ds_read_b64_tr_b16 v[{10+4*ks}:{11+4*ks}], v5 offset:{1024*ks+128}")
        if ks % 6 == 5: k("s_waitcnt lgkmcnt(0)")
    k.stamp(1)
    k(f"""
    s_cmp_lg_u32 s3, 0
    s_cbranch_scc1 L_k2_b2
    v_mov_b32 v5, 0
    s_mov_b32 s41, 0
    s_lshl_b32 s43, s2, 7
    L_k2_poll:
    buffer_load_dwordx2 v[6:7], v5, s[72:75], s43 offen sc1
    s_waitcnt vmcnt(0)
    v_readfirstlane_b32 s70, v6
    v_readfirstlane_b32 s71, v7
    s_add_u32 s41, s41, 1
    s_nop 2
    s_sub_u32 s70, s70, s68
    s_subb_u32 s71, s71, s69
    s_cmp_eq_u32 s71, 0
    s_cbranch_scc1 L_k2_got
    s_sleep 2
    s_cmp_lt_u32 s41, 0x100000
    s_cbranch_scc1 L_k2_poll
    L_k2_got:
    ;STAMP 2
    v_lshlrev_b32 v5, 4, v1
    """)
    for i in range(5):
        k(f"buffer_load_dwordx4 v[{MB+4*i}:{MB+3+4*i}], v5, s[32:35], 0 offen offset:{1024*(i%4)} sc1" if i < 4 else
          f"v_add_u32 v6, 4096, v5\nbuffer_load_dwordx4 v[{MB+16}:{MB+19}], v6, s[32:35], 0 offen sc1")
    k(f"v_add_u32 v5, {AUX}, v5")
    for i in range(5):
        k(f"s_waitcnt vmcnt({4-i})\nds_write_b128 v5, v[{MB+4*i}:{MB+3+4*i}] offset:{1024*i}")
    k("s_waitcnt lgkmcnt(0)\ns_branch L_k2_b2")
    k("""
    L_k2_h:
    v_mov_b32 v70, 0
    s_cmp_lg_u32 s3, 8
    s_cbranch_scc1 L_k2_h2
    v_mov_b32 v5, 0
    v_mov_b32 v70, 1
    s_mov_b64 exec, 1
    buffer_atomic_add v70, v5, s[60:63], 0 offen sc0 sc1
    s_mov_b64 exec, -1
    L_k2_h2:
    """)
    k("""
    s_and_b32 s44, s2, 7
    s_lshr_b32 s45, s2, 3
    s_and_b32 s45, s45, 3
    s_lshr_b32 s46, s2, 5
    s_lshl_b32 s46, s46, 3
    s_add_u32 s46, s46, s44
    s_lshl_b32 s47, s46, 2
    s_add_u32 s47, s47, s45
    s_lshl_b32 s48, s47, 4
    s_cmp_ge_u32 s46, 54
    s_cbranch_scc1 L_k2_hb0
    """)
    k.srd(28, 18, 576 * 6912)
    k.srd(64, 16, 1152)
    k("""
    v_mov_b32 v8, v0
    v_and_b32 v9, 3, v8
    v_lshrrev_b32 v7, 2, v8
    s_movk_i32 s41, 6912
    v_mul_lo_u32 v5, v7, s41
    v_lshl_add_u32 v5, v9, 3, v5
    v_lshlrev_b32 v6, 1, v7
    s_lshl_b32 s41, s48, 1
    """)
    for p in range(9):
        k(f"buffer_load_ushort v{10+p}, v6, s[64:67], 0 offen offset:{128*p}")
    for p in range(9):
        k(f"buffer_load_dwordx2 v[{20+2*p}:{21+2*p}], v5, s[28:31], s41 offen")
        if p < 8: k(f"s_add_u32 s41, s41, {64*6912}")
    k("s_barrier")
    k("v_mov_b32 v40, 0\nv_mov_b32 v41, 0\nv_mov_b32 v42, 0\nv_mov_b32 v43, 0")
    k(f"s_mov_b32 s41, {fhex(-LOG2E)}")
    k("s_waitcnt vmcnt(9)")
    for p in range(9):
        c = 10 + p
        k(f"v_lshlrev_b32 v{c}, 16, v{c}\nv_mul_f32 v44, s41, v{c}\nv_exp_f32 v44, v44\ns_nop 0\nv_add_f32 v44, 1.0, v44\nv_rcp_f32 v44, v44\ns_nop 0\nv_mul_f32 v{c}, v{c}, v44")
        bf16r(k, c, c)
    for p in range(9):
        k(f"s_waitcnt vmcnt({8-p})")
        for d in range(2):
            w = 20 + 2 * p + d
            k(f"v_lshlrev_b32 v44, 16, v{w}\nv_and_b32 v45, 0xffff0000, v{w}\nv_fmac_f32 v{40+2*d}, v{10+p}, v44\nv_fmac_f32 v{41+2*d}, v{10+p}, v45")
    k.nop(2)
    for sh in (4, 8):
        for i in range(4):
            k(f"v_add_f32_dpp v{40+i}, v{40+i}, v{40+i} row_ror:{sh} row_mask:0xf bank_mask:0xf")
        k.nop(2)
    k(f"""
    v_lshrrev_b32 v7, 4, v8
    v_lshlrev_b32 v7, 6, v7
    v_lshl_add_u32 v7, v9, 4, v7
    v_add_u32 v7, {AUX+6144}, v7
    v_and_b32 v6, 15, v8
    v_cmp_gt_u32 vcc, 4, v6
    s_and_saveexec_b64 s[42:43], vcc
    ds_write_b128 v7, v[40:43]
    s_mov_b64 exec, s[42:43]
    s_waitcnt lgkmcnt(0)
    s_branch L_k2_hb1
    L_k2_hb0:
    s_barrier
    L_k2_hb1:
    ;STAMP 0
    s_barrier
    ;STAMP 1
    s_cmp_lg_u32 s3, 5
    s_cbranch_scc1 L_k2_pack
    s_cmp_ge_u32 s46, 54
    s_cbranch_scc1 L_k2_pack
    v_and_b32 v7, 15, v1
    v_lshlrev_b32 v7, 2, v7
    v_add_u32 v6, {AUX+6144}, v7
    """)
    for p in range(16):
        k(f"ds_read_b32 v{50+p}, v6 offset:{64*p}")
    k("s_waitcnt lgkmcnt(0)")
    for st in (8, 4, 2, 1):
        for i in range(st):
            k(f"v_add_f32 v{50+i}, v{50+i}, v{50+i+st}")
    bf16r(k, 50, 50)
    k("""
    s_mul_i32 s41, s47, 1821
    s_lshr_b32 s41, s41, 16
    s_cmp_eq_u32 s41, 1
    s_cselect_b32 s42, 1, 0
    s_cmp_eq_u32 s41, 4
    s_cselect_b32 s42, 1, s42
    s_cmp_eq_u32 s42, 0
    s_cbranch_scc1 L_k2_gst
    v_add_f32 v50, 1.0, v50
    """)
    bf16r(k, 50, 50)
    k.srd(64, 20, MODH_SZ, MODH)
    k("""
    L_k2_gst:
    s_mov_b64 exec, 0xffff
    s_lshl_b32 s42, s48, 2
    buffer_store_dword v50, v7, s[32:35], s42 offen sc1
    s_cmp_ge_u32 s41, 2
    s_cbranch_scc1 L_k2_g2
    s_waitcnt vmcnt(0)
    v_mov_b32 v5, 0
    v_mov_b32 v6, 65536
    s_mov_b64 exec, 1
    buffer_atomic_add v6, v5, s[60:63], 0 offen sc0 sc1
    s_waitcnt vmcnt(0)
    s_mov_b64 exec, -1
    v_readfirstlane_b32 s70, v6
    s_nop 3
    s_cmp_lg_u32 s70, 4653312
    s_cbranch_scc1 L_k2_nab
    s_memrealtime s[70:71]
    v_lshlrev_b32 v5, 7, v1
    s_waitcnt lgkmcnt(0)
    v_mov_b32 v6, s70
    v_mov_b32 v7, s71
    s_mov_b32 s70, 0
    buffer_store_dwordx2 v[6:7], v5, s[72:75], s70 offen sc1
    s_movk_i32 s70, 8192
    buffer_store_dwordx2 v[6:7], v5, s[72:75], s70 offen sc1
    s_movk_i32 s70, 16384
    buffer_store_dwordx2 v[6:7], v5, s[72:75], s70 offen sc1
    s_movk_i32 s70, 24576
    buffer_store_dwordx2 v[6:7], v5, s[72:75], s70 offen sc1
    L_k2_nab:
    s_branch L_k2_g3
    L_k2_g2:
    s_sub_u32 s41, s41, 3
    s_cmp_ge_u32 s41, 2
    s_cbranch_scc1 L_k2_g3
    """)
    k.srd(64, 20, MODH_SZ, MODH)
    k("""
    s_sub_u32 s42, s48, 1728
    s_mul_i32 s43, s41, 1152
    s_sub_u32 s42, s42, s43
    s_add_u32 s42, s42, 576
    s_lshl_b32 s42, s42, 1
    v_lshrrev_b32 v51, 16, v50
    v_lshrrev_b32 v7, 1, v7
    buffer_store_short v51, v7, s[64:67], s42 offen
    L_k2_g3:
    s_mov_b64 exec, -1
    ;STAMP 2
    L_k2_pack:
    s_cmp_lg_u32 s3, 8
    s_cbranch_scc1 L_k2_naa
    s_waitcnt vmcnt(0)
    v_readfirstlane_b32 s70, v70
    s_nop 3
    s_cmp_lg_u32 s70, 4718847
    s_cbranch_scc1 L_k2_naa
    s_memrealtime s[70:71]
    v_lshlrev_b32 v5, 7, v1
    s_waitcnt lgkmcnt(0)
    v_mov_b32 v6, s70
    v_mov_b32 v7, s71
    s_mov_b32 s70, 0
    buffer_store_dwordx2 v[6:7], v5, s[72:75], s70 offen sc1
    s_movk_i32 s70, 8192
    buffer_store_dwordx2 v[6:7], v5, s[72:75], s70 offen sc1
    s_movk_i32 s70, 16384
    buffer_store_dwordx2 v[6:7], v5, s[72:75], s70 offen sc1
    s_movk_i32 s70, 24576
    buffer_store_dwordx2 v[6:7], v5, s[72:75], s70 offen sc1
    L_k2_naa:
    buffer_load_dwordx4 v[80:83], v4, s[24:27], s40 offen
    s_add_u32 s40, s40, 9216
    buffer_load_dwordx4 v[84:87], v4, s[24:27], s40 offen
    s_add_u32 s40, s40, 9216
    buffer_load_dwordx4 v[88:91], v4, s[24:27], s40 offen
    s_add_u32 s40, s40, 9216
    buffer_load_dwordx4 v[92:95], v4, s[24:27], s40 offen
    s_add_u32 s40, s40, 9216
    buffer_load_dwordx4 v[96:99], v4, s[24:27], s40 offen
    s_add_u32 s40, s40, 9216
    buffer_load_dwordx4 v[100:103], v4, s[24:27], s40 offen
    s_add_u32 s40, s40, 9216
    buffer_load_dwordx4 v[104:107], v4, s[24:27], s40 offen
    s_add_u32 s40, s40, 9216
    buffer_load_dwordx4 v[108:111], v4, s[24:27], s40 offen
    s_lshl_b32 s41, s2, 2
    s_add_u32 s41, s41, s3
    s_sub_u32 s41, s41, 5
    s_cmp_ge_u32 s41, 648
    s_cbranch_scc1 L_k2_b2
    """)
    k.srd(64, 20, WO_SZ, WOP)
    k.srd(28, 12, 576 * 1152)
    k("""
    s_mul_i32 s42, s41, 3641
    s_lshr_b32 s42, s42, 16
    s_mul_i32 s43, s42, 18
    s_sub_u32 s43, s41, s43
    v_and_b32 v6, 15, v1
    v_lshrrev_b32 v7, 4, v1
    v_lshlrev_b32 v5, 3, v7
    s_lshl_b32 s43, s43, 5
    v_add_u32 v5, s43, v5
    v_mul_u32_u24 v5, 1152, v5
    v_lshl_add_u32 v5, v6, 1, v5
    s_lshl_b32 s42, s42, 5
    s_add_u32 s43, s42, 4608
    """)
    for j in range(8):
        k(f"buffer_load_ushort v{20+j}, v5, s[28:31], s{42 if j < 4 else 43} offen offset:{(j&3)*1152}")
    k("""
    v_lshlrev_b32 v6, 4, v1
    s_lshl_b32 s41, s41, 10
    s_waitcnt vmcnt(0)
    v_lshl_or_b32 v10, v21, 16, v20
    v_lshl_or_b32 v11, v23, 16, v22
    v_lshl_or_b32 v12, v25, 16, v24
    v_lshl_or_b32 v13, v27, 16, v26
    buffer_store_dwordx4 v[10:13], v6, s[64:67], s41 offen
    """)
    k(f"""
    L_k2_b2:
    s_barrier
    v_lshlrev_b32 v5, 3, v2
    v_add_u32 v5, {AUX+5120}, v5
    v_lshlrev_b32 v6, 5, v3
    v_add_u32 v6, {AUX}, v6
    ds_read_b128 v[{MB}:{MB+3}], v6
    ds_read_b128 v[{MB+4}:{MB+7}], v6 offset:16
    ds_read_b128 v[{MB+8}:{MB+11}], v6 offset:2304
    ds_read_b128 v[{MB+12}:{MB+15}], v6 offset:2320
    """)
    k.stamp(3)
    for p in range(8):
        k(f"ds_read_b64 v[{STB+2*p}:{STB+1+2*p}], v5 offset:{64*p}")
    k("""
    v_xor_b32 v5, v3, v2
    v_mul_u32_u24 v4, 1152, v2
    v_lshl_add_u32 v4, v5, 4, v4
    s_waitcnt vmcnt(0) lgkmcnt(0)
    """)
    for p in range(8):
        for d in range(4):
            x = XB + 4 * p + d
            k(f"v_lshlrev_b32 v{TMP}, 16, v{x}")
            k(f"v_and_b32 v{TMP+1}, 0xffff0000, v{x}")
            k(f"v_fma_f32 v{TMP}, v{TMP}, v{STB+2*p}, v{STB+1+2*p}")
            k(f"v_fma_f32 v{TMP+1}, v{TMP+1}, v{STB+2*p}, v{STB+1+2*p}")
            k(f"v_fma_f32 v{TMP}, v{TMP}, v{MB+8+2*d}, v{MB+2*d}")
            k(f"v_fma_f32 v{TMP+1}, v{TMP+1}, v{MB+9+2*d}, v{MB+1+2*d}")
            k(f"v_cvt_pk_bf16_f32 v{x}, v{TMP}, v{TMP+1}")
        k(f"ds_write_b128 v4, v[{XB+4*p}:{XB+3+4*p}] offset:{9216*p}")
    old = gen_k2()
    idx = next(i for i, ln in enumerate(old.lines) if ln == "L_k2_lnd:")
    tail = old.lines[idx + 1:]
    out = []
    for ln in tail:
        if ln.startswith(';STAMP'): continue
        out.append(ln)
        if ln == "L_k2_k:":
            out += ["s_cmp_lg_u32 s23, 37", "s_cbranch_scc1 L_k2_kz", "v_cmp_eq_u32 vcc, 0, v4", "s_nop 1"]
            for tt in range(4):
                out += [f"v_cndmask_b32 v{ACC+4*tt}, 0, v{ACC+4*tt}, vcc", f"v_cndmask_b32 v{ACC+4*tt+1}, 0, v{ACC+4*tt+1}, vcc",
                        f"v_mov_b32 v{ACC+4*tt+2}, 0", f"v_mov_b32 v{ACC+4*tt+3}, 0"]
            out += ["L_k2_kz:"]
    k.lines += out
    return k
```

```python
import os
from fw import *
from layout import *

def gen_k6():
    NW = 8
    STG = 36864
    NST = 18
    PF = int(os.environ.get("K6_PF", "0"))
    k = Kern("ffn2_kernel", 256, (NW + 4) * 64, 4 * STG, 160)
    DM = [0, 1, 2, 3, 4]
    AT = [5, 6]; AW = [7, 8]
    W = 12; T = [48, 56]; ACC = 64
    def acc(wf, tf): return ACC + 4 * (wf * 2 + tf)
    TMP = 136
    k(f"""
    s_load_dwordx2 s[8:9], s[0:1], 64
    s_load_dwordx4 s[12:15], s[0:1], 88
    s_load_dwordx2 s[20:21], s[0:1], 104
    v_and_b32 v{TMP}, 63, v0
    v_lshrrev_b32 v2, 6, v0
    s_nop 0
    v_readfirstlane_b32 s3, v2
    s_cmp_ge_u32 s2, 256
    s_cbranch_scc1 L_k6_end
    s_and_b32 s22, s2, 7
    s_lshr_b32 s23, s2, 3
    s_lshr_b32 s24, s22, 1
    s_and_b32 s22, s22, 1
    s_lshl_b32 s22, s22, 3
    s_and_b32 s25, s23, 7
    s_add_u32 s22, s22, s25
    s_lshr_b32 s23, s23, 3
    s_and_b32 s25, s3, 3
    s_lshr_b32 s26, s3, 2
    v_and_b32 v{TMP+1}, 15, v{TMP}
    v_lshrrev_b32 v{TMP+2}, 4, v{TMP}
    s_waitcnt lgkmcnt(0)
    """)
    L, Tt, G = TMP, TMP + 1, TMP + 2
    X, Y, Z = TMP + 3, TMP + 4, TMP + 5
    def wslot(dst, base_sreg, maxblk):
        k(f"""
        v_add_u32 v{X}, {base_sreg}, v{L}
        v_mul_u32_u24 v{Y}, 863, v{X}
        v_lshrrev_b32 v{Y}, 17, v{Y}
        v_mul_u32_u24 v{Z}, 152, v{Y}
        v_sub_u32 v{X}, v{X}, v{Z}
        v_min_u32 v{X}, 143, v{X}
        v_min_u32 v{Y}, {maxblk}, v{Y}
        v_mul_u32_u24 v{Z}, 3641, v{X}
        v_lshrrev_b32 v{Z}, 16, v{Z}
        v_lshl_add_u32 v{Y}, v{Y}, 3, v{Z}
        v_mul_u32_u24 v{Z}, 18, v{Z}
        v_sub_u32 v{X}, v{X}, v{Z}
        v_mul_u32_u24 v{Y}, 1152, v{Y}
        v_lshl_add_u32 v{dst}, v{X}, 4, v{Y}
        """)
    NBAR_TAIL = 0
    ADV = f"s_add_u32 s71, s71, {STG}\ns_cmp_eq_u32 s71, {4*STG}\ns_cselect_b32 s71, 0, s71"
    k("s_cmp_ge_u32 s3, 8\ns_cbranch_scc0 L_k6_main")
    k("s_cmp_ge_u32 s3, 10\ns_cbranch_scc1 L_k6_wl")
    k.srd(40, 20, ACT_SZ, ACT)
    k(f"""
    s_sub_u32 s76, s3, 8
    s_lshl_b32 s60, s22, 2
    s_lshl_b32 s77, s76, 1
    s_add_u32 s60, s60, s77
    s_lshl_b32 s60, s60, 12
    s_mul_i32 s77, s24, {18 << 18}
    s_add_u32 s60, s60, s77
    s_add_u32 s61, s60, 4096
    s_lshl_b32 s70, s76, 13
    v_lshlrev_b32 v0, 4, v{L}
    """)
    def dma_a():
        for h in range(2):
            k(f"s_add_u32 s79, s70, s71")
            k(f"s_add_u32 m0, s79, {h*4096}")
            k("s_nop 0")
            for q in range(4):
                k(f"buffer_load_dwordx4 v0, s[40:43], s{60+h} offen offset:{1024*q} lds")
            k(f"s_add_u32 s{60+h}, s{60+h}, {1 << 18}")
        k(ADV)
    def loader(dma, n):
        lab = k.label("ld")
        k("s_mov_b32 s71, 0")
        dma(); dma(); dma()
        k(f"s_waitcnt vmcnt({2*n})\ns_barrier\ns_mov_b32 s72, {NST-3}")
        k(f"{lab}:\ns_waitcnt vmcnt({n})\ns_barrier")
        dma()
        k(f"s_sub_u32 s72, s72, 1\ns_cmp_lg_u32 s72, 0\ns_cbranch_scc1 {lab}")
        k("s_waitcnt vmcnt(0)\ns_barrier")
        for i in range(NBAR_TAIL): k("s_barrier")
        k("s_branch L_k6_tail")
    loader(dma_a, 8)
    k("L_k6_wl:")
    k.srd(40, 8, 5308416)
    k(f"""
    s_mul_i32 s60, s24, {1152*1152}
    s_mul_i32 s77, s23, 288
    s_add_u32 s60, s60, s77
    s_sub_u32 s76, s3, 10
    s_mul_i32 s76, s76, 640
    s_lshl_b32 s70, s76, 4
    s_add_u32 s70, s70, 16384
    """)
    for q in range(10):
        wslot(q, "s76", 7)
        k("s_add_u32 s76, s76, 64")
    def dma_w():
        k("s_add_u32 s79, s70, s71")
        for q in range(10):
            k(f"s_add_u32 m0, s79, {q*1024}")
            k("s_nop 0")
            k(f"buffer_load_dwordx4 v{q}, s[40:43], s60 offen lds")
        k(f"s_add_u32 s60, s60, {64*1152}")
        k(ADV)
    loader(dma_w, 10)
    k("L_k6_main:")
    k(f"""
    v_lshrrev_b32 v{X}, 1, v{G}
    v_lshlrev_b32 v{X}, 10, v{X}
    v_and_b32 v{Y}, 1, v{G}
    v_lshl_add_u32 v{X}, v{Y}, 9, v{X}
    v_lshl_add_u32 v{X}, v{Tt}, 4, v{X}
    s_lshl_b32 s76, s25, 12
    v_add_u32 v{AT[0]}, s76, v{X}
    v_add_u32 v{AT[1]}, {2*STG}, v{AT[0]}
    v_bfe_u32 v{X}, v{L}, 2, 2
    v_lshl_add_u32 v{X}, v{G}, 3, v{X}
    v_mul_u32_u24 v{X}, 288, v{X}
    v_lshl_add_u32 v{X}, v{G}, 7, v{X}
    v_and_b32 v{Y}, 3, v{L}
    v_lshl_add_u32 v{X}, v{Y}, 3, v{X}
    s_mul_i32 s76, s26, 160
    v_add_u32 v{AW[0]}, s76, v{X}
    v_add_u32 v{AW[1]}, {2*STG}, v{AW[0]}
    v_lshlrev_b32 v{Y}, 4, v{L}
    s_lshl_b32 s40, s24, 4
    s_add_u32 s40, s40, s22
    s_lshl_b32 s40, s40, 2
    s_add_u32 s40, s40, s23
    s_lshl_b32 s40, s40, 2
    s_add_u32 s40, s40, s25
    s_mul_i32 s40, s40, {9*1024}
    s_mul_i32 s76, s26, 5120
    s_add_u32 s40, s40, s76
    """)
    k.srd(28, 20, PART_SZ, PART)
    W2, T2, A2 = 12, [52, 68], 84
    for i in range(40): k(f"v_mov_b32 v{A2+i}, 0")
    ST = os.environ.get('K6_ST', ' sc1')
    k("s_cmp_eq_u32 s26, 1\ns_cbranch_scc1 L_k6_c1")
    for ch in range(2):
        NWF = 5 - ch
        G_ = [(kk, wf) for kk in range(2) for wf in range(NWF)]
        MID = int(os.environ.get("K6_MID", "2"))
        if ch == 1: k("L_k6_c1:")
        ds = DSTrack(k)
        def rdT(p):
            a = AT[p >> 1]; o = (p & 1) * STG
            for kk in range(2):
                for tf in range(2):
                    b = T2[p % 2] + 4 * (2 * kk + tf)
                    ds.read(f"ds_read_b128 v[{b}:{b+3}], v{a} offset:{o + 2048*kk + 256*tf}", b, 4)
        def rdW(p, gi):
            kk, wf = G_[gi]
            a = AW[p >> 1]; o = (p & 1) * STG
            for j in range(2):
                b = W2 + 4 * gi + 2 * j
                ds.read(f"ds_read_b64_tr_b16 v[{b}:{b+1}], v{a} offset:{o + 16384 + kk*(32*288+512) + j*1152 + wf*32}", b, 2)
        def stage(p, sync, nxt):
            for gi, (kk, wf) in enumerate(G_):
                if gi == MID:
                    if sync: k("s_barrier")
                    if nxt:
                        rdT(p + 1)
                        for g2 in range(MID): rdW(p + 1, g2)
                ds.need((W2 + 4 * gi, 4), (T2[p % 2] + 8 * kk, 8))
                for tf in range(2):
                    a = A2 + 4 * (wf * 2 + tf)
                    t = T2[p % 2] + 4 * (2 * kk + tf)
                    k(f"v_mfma_f32_16x16x32_bf16 v[{a}:{a+3}], v[{W2+4*gi}:{W2+4*gi+3}], v[{t}:{t+3}], v[{a}:{a+3}]")
                if nxt and gi >= MID: rdW(p + 1, gi)
        def swap():
            k(f"v_swap_b32 v{AT[0]}, v{AT[1]}\nv_swap_b32 v{AW[0]}, v{AW[1]}")
        k("s_barrier")
        k.stamp(0)
        rdT(0)
        for gi in range(len(G_)): rdW(0, gi)
        head = list(ds.fifo)
        k(f"s_mov_b32 s41, 7\n.p2align 6\nL_k6_loop{ch}:")
        stage(0, True, True)
        stage(1, True, True)
        swap()
        assert [min(x) for x in ds.fifo] == [min(x) for x in head][-len(ds.fifo):]
        k(f"s_sub_u32 s41, s41, 1\ns_cmp_lg_u32 s41, 0\ns_cbranch_scc1 L_k6_loop{ch}")
        stage(0, True, True)
        stage(1, True, True)
        swap()
        stage(0, False, True)
        stage(1, False, False)
        k.nop(8)
        k.stamp(1)
        for wf in range(NWF):
            a0 = A2 + 8 * wf
            for d in range(4):
                k(f"v_cvt_pk_bf16_f32 v{a0+d}, v{a0+2*d}, v{a0+2*d+1}")
            k(f"buffer_store_dwordx4 v[{a0}:{a0+3}], v{Y}, s[28:31], s40 offen offset:{(wf%4)*1024}{ST}")
            if wf % 4 == 3: k("s_add_u32 s40, s40, 4096")
        k.stamp(2)
        if ch == 0: k("s_branch L_k6_tail")
    k("L_k6_tail:")
    k.srd(52, 12, S * 1152)
    k.srd(28, 20, X1_SZ, X1)
    k.srd(32, 20, 2304, MOD + 5 * 2304)
    k.srd(36, 20, PART_SZ, PART)
    k.srd(44, 20, FLG_SZ, FLG)
    k(f"""
    s_waitcnt vmcnt(0)
    s_barrier
    s_lshl_b32 s40, s22, 2
    s_add_u32 s40, s40, s23
    s_lshl_b32 s48, s40, 8
    s_cmp_lg_u32 s3, 0
    s_cbranch_scc1 L_k6_w
    v_mov_b32 v0, 0
    v_mov_b32 v1, 1
    s_lshl_b32 s49, s24, 2
    v_mov_b32 v2, s49
    s_mov_b64 exec, 1
    buffer_store_dword v1, v2, s[44:47], s48 offen sc1
    s_mov_b64 exec, -1
    L_k6_w:
    s_lshl_b32 s40, s40, 2
    s_add_u32 s40, s40, s24
    s_mul_i32 s40, s40, 9
    s_add_u32 s40, s40, s3
    s_lshl_b32 s40, s40, 10
    s_lshl_b32 s41, s22, 2
    s_add_u32 s41, s41, s24
    s_mul_i32 s41, s41, 36864
    s_mul_i32 s42, s23, 144
    s_lshl_b32 s43, s3, 4
    s_add_u32 s42, s42, s43
    s_lshl_b32 s43, s42, 1
    s_add_u32 s41, s41, s43
    s_add_u32 s43, s41, 18432
    s_lshl_b32 s42, s42, 2
    v_lshlrev_b32 v4, 4, v{L}
    v_mul_u32_u24 v5, 1152, v{Tt}
    v_lshl_add_u32 v5, v{G}, 3, v5
    v_lshlrev_b32 v6, 4, v{G}
    s_cmp_ge_u32 s3, 9
    s_cbranch_scc1 L_k6_nox
    buffer_load_dwordx2 v[40:41], v5, s[28:31], s41 offen
    buffer_load_dwordx2 v[42:43], v5, s[28:31], s43 offen
    buffer_load_dwordx4 v[44:47], v6, s[32:35], s42 offen
    L_k6_nox:
    s_cmp_lg_u32 s3, 0
    s_cbranch_scc1 L_k6_go
    s_mov_b32 s49, 0
    L_k6_poll:
    buffer_load_dwordx4 v[60:63], v0, s[44:47], s48 offen sc1
    s_waitcnt vmcnt(0)
    v_add3_u32 v1, v60, v61, v62
    v_add_u32 v1, v1, v63
    s_nop 0
    v_readfirstlane_b32 s50, v1
    s_add_u32 s49, s49, 1
    s_cmp_eq_u32 s50, 4
    s_cbranch_scc1 L_k6_go
    s_sleep 2
    s_cmp_lt_u32 s49, 0x100000
    s_cbranch_scc1 L_k6_poll
    L_k6_go:
    s_barrier
    ;STAMP 3
    s_cmp_ge_u32 s3, 9
    s_cbranch_scc1 L_k6_end
    """)
    for sp in range(4):
        k(f"buffer_load_dwordx4 v[{24+4*sp}:{27+4*sp}], v4, s[36:39], s40 offen sc1")
        if sp < 3: k(f"s_add_u32 s40, s40, {S*D*2}")
    for sp in range(4):
        k(f"s_waitcnt vmcnt({3-sp})")
        for d in range(4):
            w = 24 + 4 * sp + d
            if sp == 0:
                k(f"v_lshlrev_b32 v{8+2*d}, 16, v{w}")
                k(f"v_and_b32 v{9+2*d}, 0xffff0000, v{w}")
            else:
                k(f"v_lshlrev_b32 v52, 16, v{w}")
                k(f"v_and_b32 v53, 0xffff0000, v{w}")
                k(f"v_add_f32 v{8+2*d}, v{8+2*d}, v52")
                k(f"v_add_f32 v{9+2*d}, v{9+2*d}, v53")
    for d in range(4):
        k(f"v_lshlrev_b32 v52, 16, v{40+d}")
        k(f"v_and_b32 v53, 0xffff0000, v{40+d}")
        k(f"v_fmac_f32 v52, v{44+2*(d&1)}, v{8+2*d}")
        k(f"v_fmac_f32 v53, v{45+2*(d&1)}, v{9+2*d}")
        k(f"v_cvt_pk_bf16_f32 v{56+d}, v52, v53")
    k("""
    buffer_store_dwordx2 v[56:57], v5, s[52:55], s41 offen
    buffer_store_dwordx2 v[58:59], v5, s[52:55], s43 offen
    L_k6_end:
    s_endpgm
    """)
    return k

def gen_k7():
    k = Kern("fin_kernel", 576, 256, 0, 64)
    k("""
    s_load_dwordx2 s[4:5], s[0:1], 88
    s_load_dwordx2 s[20:21], s[0:1], 104
    v_and_b32 v1, 63, v0
    v_lshrrev_b32 v2, 6, v0
    v_lshlrev_b32 v4, 4, v1
    v_readfirstlane_b32 s3, v2
    s_cmp_ge_u32 s2, 576
    s_cbranch_scc1 L_k7_end
    s_lshl_b32 s22, s2, 2
    s_add_u32 s22, s22, s3
    s_mul_i32 s23, s22, 7282
    s_lshr_b32 s23, s23, 16
    s_mul_i32 s24, s23, 9
    s_sub_u32 s24, s22, s24
    s_and_b32 s25, s23, 3
    s_lshr_b32 s26, s23, 2
    s_and_b32 s26, s26, 3
    s_lshr_b32 s27, s23, 4
    v_and_b32 v2, 15, v1
    v_lshrrev_b32 v3, 4, v1
    v_mul_u32_u24 v5, 1152, v2
    v_lshl_add_u32 v5, v3, 3, v5
    v_lshlrev_b32 v6, 4, v3
    s_lshl_b32 s40, s22, 10
    s_lshl_b32 s41, s27, 2
    s_add_u32 s41, s41, s25
    s_mul_i32 s41, s41, 36864
    s_mul_i32 s42, s26, 144
    s_lshl_b32 s43, s24, 4
    s_add_u32 s42, s42, s43
    s_lshl_b32 s43, s42, 1
    s_add_u32 s41, s41, s43
    s_add_u32 s43, s41, 18432
    s_lshl_b32 s42, s42, 2
    s_waitcnt lgkmcnt(0)
    """)
    k.stamp(0)
    k.srd(24, 4, S * 1152)
    k.srd(28, 20, X1_SZ, X1)
    k.srd(32, 20, 2304, MOD + 5 * 2304)
    k.srd(36, 20, PART_SZ, PART)
    for sp in range(4):
        k(f"buffer_load_dwordx4 v[{24+4*sp}:{27+4*sp}], v4, s[36:39], s40 offen")
        if sp < 3: k(f"s_add_u32 s40, s40, {S*D*2}")
    k("""
    buffer_load_dwordx2 v[40:41], v5, s[28:31], s41 offen
    buffer_load_dwordx2 v[42:43], v5, s[28:31], s43 offen
    buffer_load_dwordx4 v[44:47], v6, s[32:35], s42 offen
    """)
    for sp in range(4):
        k(f"s_waitcnt vmcnt({6-sp})")
        if sp == 0: k.stamp(1)
        for d in range(4):
            w = 24 + 4 * sp + d
            if sp == 0:
                k(f"v_lshlrev_b32 v{8+2*d}, 16, v{w}")
                k(f"v_and_b32 v{9+2*d}, 0xffff0000, v{w}")
            else:
                k(f"v_lshlrev_b32 v52, 16, v{w}")
                k(f"v_and_b32 v53, 0xffff0000, v{w}")
                k(f"v_add_f32 v{8+2*d}, v{8+2*d}, v52")
                k(f"v_add_f32 v{9+2*d}, v{9+2*d}, v53")
    k("s_waitcnt vmcnt(0)")
    k.stamp(2)
    for d in range(4):
        k(f"v_lshlrev_b32 v52, 16, v{40+d}")
        k(f"v_and_b32 v53, 0xffff0000, v{40+d}")
        k(f"v_fmac_f32 v52, v{44+2*(d&1)}, v{8+2*d}")
        k(f"v_fmac_f32 v53, v{45+2*(d&1)}, v{9+2*d}")
        k(f"v_cvt_pk_bf16_f32 v{56+d}, v52, v53")
    k("""
    buffer_store_dwordx2 v[56:57], v5, s[24:27], s41 offen
    buffer_store_dwordx2 v[58:59], v5, s[24:27], s43 offen
    L_k7_end:
    s_endpgm
    """)
    return k
```

```python
import os
from fw import *
from layout import *
from k1 import bf16r, LOG2E
from k2 import small_gemm, gemm_addr, wave_max, QSCALE, gen_k2

def gen_k12():
    HT = 64 * 1152
    PS = 5 * 18432
    AUX = PS + 36864
    k = Kern("qkv_kernel", 256, 576, AUX + 7168, 168)
    XB, STB, MB, TMP = 80, 112, 128, 144
    ACC = 112; PK = 80
    k(f"""
    s_memrealtime s[68:69]
    s_load_dwordx8 s[4:11], s[0:1], 0
    s_load_dwordx2 s[12:13], s[0:1], 32
    s_load_dwordx4 s[16:19], s[0:1], 72
    s_load_dwordx4 s[56:59], s[0:1], 96
    v_and_b32 v1, 63, v0
    v_lshrrev_b32 v2, 6, v0
    s_nop 0
    v_readfirstlane_b32 s3, v2
    s_nop 3
    s_add_u32 s3, s3, 5
    s_cmp_ge_u32 s3, 9
    s_cselect_b32 s22, 9, 0
    s_sub_u32 s3, s3, s22
    s_cmp_ge_u32 s2, 256
    s_cbranch_scc1 L_k2_end
    s_movk_i32 s22, 911
    v_mul_lo_u32 v2, v0, s22
    v_lshrrev_b32 v2, 16, v2
    v_mul_u32_u24 v3, 72, v2
    v_sub_u32 v3, v0, v3
    s_and_b32 s22, s2, 7
    s_lshl_b32 s22, s22, 2
    s_lshr_b32 s23, s2, 3
    s_and_b32 s23, s23, 3
    s_add_u32 s22, s22, s23
    s_lshr_b32 s23, s2, 5
    s_mul_i32 s23, s23, 5
    s_add_u32 s23, s23, s3
    v_mul_u32_u24 v4, 1152, v2
    v_lshl_add_u32 v4, v3, 4, v4
    s_mul_i32 s40, s22, {HT}
    s_waitcnt lgkmcnt(0)
    s_mov_b32 s20, s58
    s_mov_b32 s21, s59
    """)
    k.srd(24, 4, S * 1152)
    k.srd(32, 20, MOD_SZ, MOD)
    k.srd(60, 56, 256)
    k.srd(72, 20, GO_SZ, GO)
    k("s_cmp_ge_u32 s3, 5\ns_cbranch_scc1 L_k2_h")
    def xloads():
        for p in range(8):
            k(f"buffer_load_dwordx4 v[{XB+4*p}:{XB+3+4*p}], v4, s[24:27], s40 offen")
            if p < 7: k("s_add_u32 s40, s40, 9216")
    def partials():
        k(f"v_mov_b32 v{TMP}, 0x3f803f80")
        for i in range(16): k(f"v_mov_b32 v{STB+i}, 0")
        k(f"v_mul_u32_u24 v5, 576, v2\nv_lshl_add_u32 v5, v3, 3, v5\nv_add_u32 v5, {PS}, v5")
        for p in range(8):
            k(f"s_waitcnt vmcnt({7-p})")
            for d in range(4):
                x = XB + 4 * p + d
                k(f"v_dot2c_f32_bf16 v{STB+2*p}, v{x}, v{TMP}")
                k(f"v_dot2c_f32_bf16 v{STB+2*p+1}, v{x}, v{x}")
        k.nop(3)
        for p in range(8):
            k(f"ds_write_b64 v5, v[{STB+2*p}:{STB+2*p+1}] offset:{4608*p}")
        k("s_waitcnt lgkmcnt(0)\ns_barrier")
    k(f"""
    s_lshr_b32 s45, s2, 5
    s_cmp_eq_u32 s45, 7
    s_cbranch_scc1 L_k2_kvw
    s_mov_b32 s36, s6
    s_mov_b32 s37, s7
    s_mov_b32 s38, 663552
    s_mov_b32 s39, 0x20000
    s_mul_i32 s42, s45, 160
    s_mov_b32 s43, {32*1152}
    s_lshl_b32 s44, s3, 10
    s_movk_i32 s46, 5120
    s_lshl_b32 s41, s3, 6
    v_add_u32 v5, s41, v1
    v_mul_u32_u24 v6, 6554, v5
    v_lshrrev_b32 v6, 16, v6
    v_mul_u32_u24 v7, 10, v6
    v_sub_u32 v5, v5, v7
    v_mul_u32_u24 v6, 1152, v6
    v_lshl_add_u32 v5, v5, 4, v6
    s_branch L_k2_wdma
    L_k2_kvw:
    s_and_b32 s42, s23, 1
    s_cmp_ge_u32 s23, 38
    s_cselect_b32 s36, s10, s8
    s_cselect_b32 s37, s11, s9
    s_cmp_ge_u32 s23, 36
    s_cselect_b32 s36, s36, s6
    s_cselect_b32 s37, s37, s7
    s_mov_b32 s38, 663552
    s_cselect_b32 s38, 20736, s38
    s_mov_b32 s39, 0x20000
    s_movk_i32 s41, 1152
    s_cselect_b32 s41, 36, s41
    s_cselect_b32 s42, s42, s23
    s_lshl_b32 s42, s42, 5
    s_lshl_b32 s43, s41, 5
    v_lshrrev_b32 v5, 1, v1
    v_mul_lo_u32 v5, v5, s41
    v_and_b32 v6, 1, v1
    v_lshl_add_u32 v5, v6, 4, v5
    s_mul_i32 s44, s3, 18432
    s_movk_i32 s46, 1024
    L_k2_wdma:
    s_mov_b32 s47, s44
    s_barrier
    """)
    for ks in range(18):
        k(f"s_mov_b32 m0, s47\ns_nop 0\nbuffer_load_dwordx4 v5, s[36:39], s42 offen lds\ns_add_u32 s42, s42, s43\ns_add_u32 s47, s47, s46")
    xloads()
    k("s_barrier")
    partials()
    k.stamp(0)
    k(f"""
    v_lshrrev_b32 v6, 4, v1
    v_bfe_u32 v5, v1, 2, 2
    v_lshl_add_u32 v5, v6, 3, v5
    v_and_b32 v6, 3, v1
    s_cmp_eq_u32 s45, 7
    s_cbranch_scc1 L_k2_trkv
    v_mul_u32_u24 v5, 160, v5
    v_lshl_add_u32 v5, v6, 3, v5
    s_lshl_b32 s41, s3, 5
    v_add_u32 v5, s41, v5
    v_add_u32 v6, {9*5120}, v5
    """)
    for ks in range(18):
        a_ = 5 if ks < 9 else 6
        k(f"ds_read_b64_tr_b16 v[{8+4*ks}:{9+4*ks}], v{a_} offset:{5120*(ks%9)}")
        k(f"ds_read_b64_tr_b16 v[{10+4*ks}:{11+4*ks}], v{a_} offset:{5120*(ks%9)+640}")
        if ks % 6 == 5: k("s_waitcnt lgkmcnt(0)")
    k("""
    s_branch L_k2_b2
    L_k2_trkv:
    v_lshlrev_b32 v5, 5, v5
    v_lshl_add_u32 v5, v6, 3, v5
    v_add_u32 v5, s44, v5
    """)
    for ks in range(18):
        k(f"ds_read_b64_tr_b16 v[{8+4*ks}:{9+4*ks}], v5 offset:{1024*ks}")
        k(f"ds_read_b64_tr_b16 v[{10+4*ks}:{11+4*ks}], v5 offset:{1024*ks+128}")
        if ks % 6 == 5: k("s_waitcnt lgkmcnt(0)")
    k("s_branch L_k2_b2")
    k("""
    L_k2_h:
    v_mov_b32 v70, 0
    s_cmp_lg_u32 s3, 8
    s_cbranch_scc1 L_k2_h2
    v_mov_b32 v5, 0
    v_mov_b32 v70, 1
    s_mov_b64 exec, 1
    buffer_atomic_add v70, v5, s[60:63], 0 offen sc0 sc1
    s_mov_b64 exec, -1
    L_k2_h2:
    """)
    k("""
    s_and_b32 s44, s2, 7
    s_lshr_b32 s45, s2, 3
    s_and_b32 s45, s45, 3
    s_lshr_b32 s46, s2, 5
    s_lshl_b32 s46, s46, 3
    s_add_u32 s46, s46, s44
    s_lshl_b32 s47, s46, 2
    s_add_u32 s47, s47, s45
    s_lshl_b32 s48, s47, 4
    s_cmp_ge_u32 s46, 54
    s_cbranch_scc1 L_k2_hb0
    """)
    k.srd(28, 18, 576 * 6912)
    k.srd(64, 16, 1152)
    k("""
    v_mov_b32 v8, v0
    v_and_b32 v9, 3, v8
    v_lshrrev_b32 v7, 2, v8
    s_movk_i32 s41, 6912
    v_mul_lo_u32 v5, v7, s41
    v_lshl_add_u32 v5, v9, 3, v5
    v_lshlrev_b32 v6, 1, v7
    s_lshl_b32 s41, s48, 1
    """)
    for p in range(9):
        k(f"buffer_load_ushort v{10+p}, v6, s[64:67], 0 offen offset:{128*p}")
    for p in range(9):
        k(f"buffer_load_dwordx2 v[{20+2*p}:{21+2*p}], v5, s[28:31], s41 offen")
        if p < 8: k(f"s_add_u32 s41, s41, {64*6912}")
    k("s_barrier")
    xloads()
    k("v_mov_b32 v40, 0\nv_mov_b32 v41, 0\nv_mov_b32 v42, 0\nv_mov_b32 v43, 0")
    k(f"s_mov_b32 s41, {fhex(-LOG2E)}")
    k("s_waitcnt vmcnt(17)")
    for p in range(9):
        c = 10 + p
        k(f"v_lshlrev_b32 v{c}, 16, v{c}\nv_mul_f32 v44, s41, v{c}\nv_exp_f32 v44, v44\ns_nop 0\nv_add_f32 v44, 1.0, v44\nv_rcp_f32 v44, v44\ns_nop 0\nv_mul_f32 v{c}, v{c}, v44")
        bf16r(k, c, c)
    for p in range(9):
        k(f"s_waitcnt vmcnt({16-p})")
        for d in range(2):
            w = 20 + 2 * p + d
            k(f"v_lshlrev_b32 v44, 16, v{w}\nv_and_b32 v45, 0xffff0000, v{w}\nv_fmac_f32 v{40+2*d}, v{10+p}, v44\nv_fmac_f32 v{41+2*d}, v{10+p}, v45")
    k.nop(2)
    for sh in (4, 8):
        for i in range(4):
            k(f"v_add_f32_dpp v{40+i}, v{40+i}, v{40+i} row_ror:{sh} row_mask:0xf bank_mask:0xf")
        k.nop(2)
    k(f"""
    v_lshrrev_b32 v7, 4, v8
    v_lshlrev_b32 v7, 6, v7
    v_lshl_add_u32 v7, v9, 4, v7
    v_add_u32 v7, {AUX+6144}, v7
    v_and_b32 v6, 15, v8
    v_cmp_gt_u32 vcc, 4, v6
    s_and_saveexec_b64 s[42:43], vcc
    ds_write_b128 v7, v[40:43]
    s_mov_b64 exec, s[42:43]
    s_waitcnt lgkmcnt(0)
    s_branch L_k2_hb1
    L_k2_hb0:
    s_barrier
    buffer_load_dwordx4 v[80:83], v4, s[24:27], s40 offen
    s_add_u32 s40, s40, 9216
    buffer_load_dwordx4 v[84:87], v4, s[24:27], s40 offen
    s_add_u32 s40, s40, 9216
    buffer_load_dwordx4 v[88:91], v4, s[24:27], s40 offen
    s_add_u32 s40, s40, 9216
    buffer_load_dwordx4 v[92:95], v4, s[24:27], s40 offen
    s_add_u32 s40, s40, 9216
    buffer_load_dwordx4 v[96:99], v4, s[24:27], s40 offen
    s_add_u32 s40, s40, 9216
    buffer_load_dwordx4 v[100:103], v4, s[24:27], s40 offen
    s_add_u32 s40, s40, 9216
    buffer_load_dwordx4 v[104:107], v4, s[24:27], s40 offen
    s_add_u32 s40, s40, 9216
    buffer_load_dwordx4 v[108:111], v4, s[24:27], s40 offen
    L_k2_hb1:
    ;STAMP 0
    s_barrier
    ;STAMP 1
    s_cmp_lg_u32 s3, 5
    s_cbranch_scc1 L_k2_pack
    s_cmp_ge_u32 s46, 54
    s_cbranch_scc1 L_k2_pack
    v_and_b32 v7, 15, v1
    v_lshlrev_b32 v7, 2, v7
    v_add_u32 v6, {AUX+6144}, v7
    """)
    for p in range(16):
        k(f"ds_read_b32 v{50+p}, v6 offset:{64*p}")
    k("s_waitcnt lgkmcnt(0)")
    for st in (8, 4, 2, 1):
        for i in range(st):
            k(f"v_add_f32 v{50+i}, v{50+i}, v{50+i+st}")
    bf16r(k, 50, 50)
    k("""
    s_mul_i32 s41, s47, 1821
    s_lshr_b32 s41, s41, 16
    s_cmp_eq_u32 s41, 1
    s_cselect_b32 s42, 1, 0
    s_cmp_eq_u32 s41, 4
    s_cselect_b32 s42, 1, s42
    s_cmp_eq_u32 s42, 0
    s_cbranch_scc1 L_k2_gst
    v_add_f32 v50, 1.0, v50
    """)
    bf16r(k, 50, 50)
    k.srd(64, 20, MODH_SZ, MODH)
    k("""
    L_k2_gst:
    s_mov_b64 exec, 0xffff
    s_lshl_b32 s42, s48, 2
    buffer_store_dword v50, v7, s[32:35], s42 offen sc1
    s_cmp_ge_u32 s41, 2
    s_cbranch_scc1 L_k2_g2
    s_waitcnt vmcnt(0)
    v_mov_b32 v5, 0
    v_mov_b32 v6, 65536
    s_mov_b64 exec, 1
    buffer_atomic_add v6, v5, s[60:63], 0 offen sc0 sc1
    s_waitcnt vmcnt(0)
    s_mov_b64 exec, -1
    v_readfirstlane_b32 s70, v6
    s_nop 3
    s_cmp_lg_u32 s70, 4653312
    s_cbranch_scc1 L_k2_nab
    s_memrealtime s[70:71]
    v_lshlrev_b32 v5, 7, v1
    s_waitcnt lgkmcnt(0)
    v_mov_b32 v6, s70
    v_mov_b32 v7, s71
    s_mov_b32 s70, 0
    buffer_store_dwordx2 v[6:7], v5, s[72:75], s70 offen sc1
    s_movk_i32 s70, 8192
    buffer_store_dwordx2 v[6:7], v5, s[72:75], s70 offen sc1
    s_movk_i32 s70, 16384
    buffer_store_dwordx2 v[6:7], v5, s[72:75], s70 offen sc1
    s_movk_i32 s70, 24576
    buffer_store_dwordx2 v[6:7], v5, s[72:75], s70 offen sc1
    L_k2_nab:
    s_branch L_k2_g3
    L_k2_g2:
    s_sub_u32 s41, s41, 3
    s_cmp_ge_u32 s41, 2
    s_cbranch_scc1 L_k2_g3
    """)
    k.srd(64, 20, MODH_SZ, MODH)
    k("""
    s_sub_u32 s42, s48, 1728
    s_mul_i32 s43, s41, 1152
    s_sub_u32 s42, s42, s43
    s_add_u32 s42, s42, 576
    s_lshl_b32 s42, s42, 1
    v_lshrrev_b32 v51, 16, v50
    v_lshrrev_b32 v7, 1, v7
    buffer_store_short v51, v7, s[64:67], s42 offen
    L_k2_g3:
    s_mov_b64 exec, -1
    ;STAMP 2
    L_k2_pack:
    s_cmp_lg_u32 s3, 8
    s_cbranch_scc1 L_k2_naa
    s_waitcnt vmcnt(0)
    v_readfirstlane_b32 s70, v70
    s_nop 3
    s_cmp_lg_u32 s70, 4718847
    s_cbranch_scc1 L_k2_naa
    s_memrealtime s[70:71]
    v_lshlrev_b32 v5, 7, v1
    s_waitcnt lgkmcnt(0)
    v_mov_b32 v6, s70
    v_mov_b32 v7, s71
    s_mov_b32 s70, 0
    buffer_store_dwordx2 v[6:7], v5, s[72:75], s70 offen sc1
    s_movk_i32 s70, 8192
    buffer_store_dwordx2 v[6:7], v5, s[72:75], s70 offen sc1
    s_movk_i32 s70, 16384
    buffer_store_dwordx2 v[6:7], v5, s[72:75], s70 offen sc1
    s_movk_i32 s70, 24576
    buffer_store_dwordx2 v[6:7], v5, s[72:75], s70 offen sc1
    L_k2_naa:
    """)
    partials()
    k("s_cmp_eq_u32 s3, 8\ns_cbranch_scc1 L_k2_pollw\ns_cmp_eq_u32 s3, 5\ns_cbranch_scc1 L_k2_b2")
    k(f"""
    v_subrev_u32 v5, 64, v0
    v_lshrrev_b32 v6, 1, v5
    v_and_b32 v7, 1, v5
    v_mul_u32_u24 v5, 576, v6
    v_lshl_add_u32 v5, v7, 2, v5
    v_add_u32 v5, {PS}, v5
    """)
    for i in range(72):
        k(f"ds_read_b32 v{8+i}, v5 offset:{8*i}")
        if i % 12 == 11: k("s_waitcnt lgkmcnt(0)")
    for a_ in range(4):
        for i in range(a_ + 4, 72, 4):
            k(f"v_add_f32 v{8+a_}, v{8+a_}, v{8+i}")
    k(f"""
    v_add_f32 v8, v8, v9
    v_add_f32 v10, v10, v11
    v_add_f32 v8, v8, v10
    v_mul_f32 v8, {fhex(1.0/576)}, v8
    s_nop 1
    v_mov_b32_dpp v9, v8 quad_perm:[1,0,3,2] row_mask:0xf bank_mask:0xf
    v_fma_f32 v9, -v8, v8, v9
    v_max_f32 v9, 0, v9
    """)
    bf16r(k, 9, 9)
    k(f"v_add_f32 v9, {fhex(1e-5)}, v9")
    bf16r(k, 9, 9)
    k("v_sqrt_f32 v9, v9\ns_nop 0")
    bf16r(k, 9, 9)
    k("v_rcp_f32 v10, v9")
    bf16r(k, 8, 8)
    k(f"""
    v_mul_f32 v11, v8, v10
    v_sub_f32 v11, 0, v11
    v_lshlrev_b32 v6, 3, v6
    v_add_u32 v6, {AUX+5120}, v6
    v_cmp_eq_u32 vcc, 0, v7
    s_and_saveexec_b64 s[42:43], vcc
    ds_write_b64 v6, v[10:11]
    s_mov_b64 exec, s[42:43]
    s_waitcnt lgkmcnt(0)
    s_branch L_k2_b2
    L_k2_pollw:
    """)
    k(f"""
    v_mov_b32 v5, 0
    s_mov_b32 s41, 0
    s_lshl_b32 s43, s2, 7
    L_k2_poll:
    buffer_load_dwordx2 v[6:7], v5, s[72:75], s43 offen sc1
    s_waitcnt vmcnt(0)
    v_readfirstlane_b32 s70, v6
    v_readfirstlane_b32 s71, v7
    s_add_u32 s41, s41, 1
    s_nop 2
    s_sub_u32 s70, s70, s68
    s_subb_u32 s71, s71, s69
    s_cmp_eq_u32 s71, 0
    s_cbranch_scc1 L_k2_got
    s_sleep 2
    s_cmp_lt_u32 s41, 0x100000
    s_cbranch_scc1 L_k2_poll
    L_k2_got:
    ;STAMP 2
    v_lshlrev_b32 v5, 4, v1
    """)
    for i in range(5):
        k(f"buffer_load_dwordx4 v[{MB+4*i}:{MB+3+4*i}], v5, s[32:35], 0 offen offset:{1024*(i%4)} sc1" if i < 4 else
          f"v_add_u32 v6, 4096, v5\nbuffer_load_dwordx4 v[{MB+16}:{MB+19}], v6, s[32:35], 0 offen sc1")
    k(f"v_add_u32 v5, {AUX}, v5")
    for i in range(5):
        k(f"s_waitcnt vmcnt({4-i})\nds_write_b128 v5, v[{MB+4*i}:{MB+3+4*i}] offset:{1024*i}")
    k("s_waitcnt lgkmcnt(0)")
    k(f"""
    L_k2_b2:
    s_barrier
    v_lshlrev_b32 v5, 3, v2
    v_add_u32 v5, {AUX+5120}, v5
    v_lshlrev_b32 v6, 5, v3
    v_add_u32 v6, {AUX}, v6
    ds_read_b128 v[{MB}:{MB+3}], v6
    ds_read_b128 v[{MB+4}:{MB+7}], v6 offset:16
    ds_read_b128 v[{MB+8}:{MB+11}], v6 offset:2304
    ds_read_b128 v[{MB+12}:{MB+15}], v6 offset:2320
    """)
    k.stamp(3)
    for p in range(8):
        k(f"ds_read_b64 v[{STB+2*p}:{STB+1+2*p}], v5 offset:{64*p}")
    k("""
    v_xor_b32 v5, v3, v2
    v_mul_u32_u24 v4, 1152, v2
    v_lshl_add_u32 v4, v5, 4, v4
    s_waitcnt vmcnt(0) lgkmcnt(0)
    """)
    for p in range(8):
        for d in range(4):
            x = XB + 4 * p + d
            k(f"v_lshlrev_b32 v{TMP}, 16, v{x}")
            k(f"v_and_b32 v{TMP+1}, 0xffff0000, v{x}")
            k(f"v_fma_f32 v{TMP}, v{TMP}, v{STB+2*p}, v{STB+1+2*p}")
            k(f"v_fma_f32 v{TMP+1}, v{TMP+1}, v{STB+2*p}, v{STB+1+2*p}")
            k(f"v_fma_f32 v{TMP}, v{TMP}, v{MB+8+2*d}, v{MB+2*d}")
            k(f"v_fma_f32 v{TMP+1}, v{TMP+1}, v{MB+9+2*d}, v{MB+1+2*d}")
            k(f"v_cvt_pk_bf16_f32 v{x}, v{TMP}, v{TMP+1}")
        k(f"ds_write_b128 v4, v[{XB+4*p}:{XB+3+4*p}] offset:{9216*p}")
    old = gen_k2()
    idx = next(i for i, ln in enumerate(old.lines) if ln == "L_k2_lnd:")
    tail = old.lines[idx + 1:]
    out = []
    for ln in tail:
        if ln.startswith(';STAMP'): continue
        out.append(ln)
        if ln == "L_k2_k:":
            out += ["s_cmp_lg_u32 s23, 37", "s_cbranch_scc1 L_k2_kz", "v_cmp_eq_u32 vcc, 0, v4", "s_nop 1"]
            for tt in range(4):
                out += [f"v_cndmask_b32 v{ACC+4*tt}, 0, v{ACC+4*tt}, vcc", f"v_cndmask_b32 v{ACC+4*tt+1}, 0, v{ACC+4*tt+1}, vcc",
                        f"v_mov_b32 v{ACC+4*tt+2}, 0", f"v_mov_b32 v{ACC+4*tt+3}, 0"]
            out += ["L_k2_kz:"]
    k.lines += out
    return k
```

```python
import os
from fw import *
from layout import *

def gen_k3():
    k = Kern("attn_kernel", 256, 512, 163840, 168)
    HALF = 32 * KV_TILE
    Q1 = [8, 16]; Q2 = [12, 20]
    K1 = [24, 28]; K2 = [32, 36]
    V = [[40, 44], [48, 52]]
    Sb = [56, 72]
    P = 88
    OA = [96, 112]
    AK1, AK2, AV = 128, 129, 130
    CF, WF, CA, AD, AT_, AC = 132, 136, 140, 144, 145, 146
    X = 148
    WARM = os.environ.get("K3_WARM", "gud")
    NOSIDE = os.environ.get("K3_NOSIDE")
    PRIO = os.environ.get("K3_PRIO", "")
    VZ = os.environ.get("K3_VZ", "1") == "1"
    k(f"""
    s_load_dwordx2 s[20:21], s[0:1], 104
    s_load_dwordx4 s[64:67], s[0:1], 48
    s_load_dwordx2 s[68:69], s[0:1], 64
    v_and_b32 v1, 63, v0
    v_lshrrev_b32 v2, 6, v0
    v_lshlrev_b32 v7, 4, v1
    v_readfirstlane_b32 s3, v2
    s_cmp_ge_u32 s2, 256
    s_cbranch_scc1 L_k3_end
    s_and_b32 s4, s3, 3
    s_lshr_b32 s5, s3, 2
    s_lshl_b32 s22, s2, 3
    s_lshl_b32 s6, s4, 1
    s_add_u32 s22, s22, s6
    s_mul_i32 s22, s22, 1152
    s_add_u32 s6, s22, 1152
    v_and_b32 v3, 31, v1
    v_lshrrev_b32 v4, 5, v1
    v_mul_u32_u24 v6, 36, v3
    v_lshl_add_u32 v5, v4, 4, v6
    s_mul_i32 s7, s5, {HALF}
    s_lshl_b32 s23, s4, 10
    s_add_u32 s23, s23, s7
    s_waitcnt lgkmcnt(0)
    """)
    k.srd(24, 20, Q_SZ, Q)
    k.srd(28, 20, KMAX_SZ, KMAX)
    k.srd(32, 20, KV_SZ, KV)
    k.srd(36, 20, O_SZ, O)
    k(f"""
    buffer_load_dwordx4 v[{Q1[0]}:{Q1[0]+3}], v5, s[24:27], s22 offen
    buffer_load_dword v{Q2[0]}, v6, s[24:27], s22 offen offset:32
    buffer_load_dwordx4 v[{Q1[1]}:{Q1[1]+3}], v5, s[24:27], s6 offen
    buffer_load_dword v{Q2[1]}, v6, s[24:27], s6 offen offset:32
    buffer_load_dwordx4 v[{X}:{X+3}], v7, s[28:31], 0 offen
    s_mov_b32 s49, s23
    """)
    def dma1():
        k("s_mov_b32 m0, s49\ns_nop 0\nbuffer_load_dwordx4 v7, s[32:35], s49 offen lds\ns_add_u32 s49, s49, 4096")
    for j in range(4): dma1()
    k(f"""
    v_add_u32 v{AK1}, s7, v7
    v_lshlrev_b32 v{AK2}, 3, v3
    v_add_u32 v{AK2}, 1024, v{AK2}
    v_add_u32 v{AK2}, s7, v{AK2}
    v_subrev_u32 v{X+4}, 20, v3
    v_subrev_u32 v{X+5}, 12, v3
    v_cmp_gt_u32 vcc, 24, v3
    s_nop 1
    v_cndmask_b32 v{X+4}, v{X+5}, v{X+4}, vcc
    v_min_u32 v{X+4}, 18, v{X+4}
    v_cmp_gt_u32 vcc, 19, v3
    s_nop 1
    v_cndmask_b32 v{X+4}, v{X+4}, v3, vcc
    v_mul_u32_u24 v{AV}, 304, v4
    v_lshl_add_u32 v{AV}, v{X+4}, 4, v{AV}
    v_add_u32 v{AV}, 1280, v{AV}
    v_add_u32 v{AV}, s7, v{AV}
    """)
    for q in range(2):
        for r in (1, 2, 3): k(f"v_mov_b32 v{Q2[q]+r}, 0")
        for r in (2, 3): k(f"v_mov_b32 v{K2[q]+r}, 0")
        for i in range(16): k(f"v_mov_b32 v{OA[q]+i}, 0")
    for i in range(4):
        k(f"v_mov_b32 v{P+4+i}, 0\nv_mov_b32 v{V[1][1]+i}, 0\nv_mov_b32 v{CA+i}, 0")
    k(f"""
    s_cmp_lt_u32 s2, 144
    s_cselect_b32 s50, 1, 0
    s_cmp_ge_u32 s2, 72
    s_cselect_b32 s51, 1, 0
    s_cselect_b32 s8, s66, s64
    s_cselect_b32 s9, s67, s65
    s_mov_b32 s10, 5308416
    s_mov_b32 s11, 0x20000
    s_mul_i32 s77, s51, 72
    s_sub_u32 s77, s2, s77
    s_lshl_b32 s77, s77, 2
    s_add_u32 s77, s77, s4
    s_lshl_b32 s79, s77, 5
    s_lshl_b32 s78, s4, 10
    s_add_u32 s78, s78, {64*KV_TILE}
    v_lshrrev_b32 v{AD}, 1, v1
    s_movk_i32 s40, 9216
    v_mul_lo_u32 v{AD}, v{AD}, s40
    v_and_b32 v{AT_}, 1, v1
    v_lshl_add_u32 v{AD}, v{AT_}, 4, v{AD}
    v_lshrrev_b32 v{AC}, 4, v1
    v_bfe_u32 v{AT_}, v1, 2, 2
    v_lshl_add_u32 v{AT_}, v{AC}, 3, v{AT_}
    v_lshlrev_b32 v{AT_}, 5, v{AT_}
    v_and_b32 v{CF}, 3, v1
    v_lshl_add_u32 v{AT_}, v{CF}, 3, v{AT_}
    v_add_u32 v{AT_}, s78, v{AT_}
    v_and_b32 v{CF}, 15, v1
    v_mul_u32_u24 v{CF}, 1152, v{CF}
    v_lshl_add_u32 v{AC}, v{AC}, 4, v{CF}
    s_mov_b32 s41, 0
    s_mov_b32 s18, 0
    s_lshl_b32 s76, s2, 2
    s_add_u32 s76, s76, s4
    s_mul_i32 s76, s76, 5184
    s_mov_b32 s70, s76
    s_mov_b32 s72, s64
    s_mov_b32 s73, s65
    s_mov_b32 s74, 5308416
    s_mov_b32 s75, 0x20000
    """)
    k.srd(44, 20, MODH_SZ, MODH)
    k("s_mov_b32 s58, 0x7ffff\ns_mov_b32 s59, 0x7ffff")
    for i in range(16): k(f"v_mov_b32 v{V[0][0]+i}, 0")
    N0, N1, BP = X + 4, X + 5, X + 6
    k(f"""
    s_waitcnt vmcnt(4)
    v_cmp_eq_u32 vcc, 0, v4
    v_xor_b32 v{BP}, 32, v1
    v_lshlrev_b32 v{BP}, 2, v{BP}
    v_cndmask_b32 v{Q2[0]}, 0, v{Q2[0]}, vcc
    v_cndmask_b32 v{Q2[1]}, 0, v{Q2[1]}, vcc
    v_mov_b32 v{N0}, 0
    v_mov_b32 v{N1}, 0
    """)
    k(f"""
    s_waitcnt vmcnt(0)
    s_barrier
    """)
    k("L_k3_main:")
    ds = DSTrack(k)
    def rdK(rel):
        b = rel % 2
        ds.read(f"ds_read_b128 v[{K1[b]}:{K1[b]+3}], v{AK1} offset:{rel*KV_TILE}", K1[b], 4)
        ds.read(f"ds_read_b64 v[{K2[b]}:{K2[b]+1}], v{AK2} offset:{rel*KV_TILE}", K2[b], 2)
    def rdV(rel):
        b = rel % 2
        if VZ: k("s_mov_b64 exec, s[58:59]")
        ds.read(f"ds_read_b128 v[{V[b][0]}:{V[b][0]+3}], v{AV} offset:{rel*KV_TILE}", V[b][0], 4)
        ds.read(f"ds_read_b128 v[{V[b][1]}:{V[b][1]+3}], v{AV} offset:{rel*KV_TILE+608}", V[b][1], 4)
        if VZ: k("s_mov_b64 exec, -1")
    def mf_qk1(u):
        t, q = u // 2, u % 2
        k(f"v_mfma_f32_32x32x16_bf16 v[{Sb[q]}:{Sb[q]+15}], v[{K1[t%2]}:{K1[t%2]+3}], v[{Q1[q]}:{Q1[q]+3}], 0")
    def mf_qk2(u):
        t, q = u // 2, u % 2
        k(f"v_mfma_f32_32x32x16_bf16 v[{Sb[q]}:{Sb[q]+15}], v[{K2[t%2]}:{K2[t%2]+3}], v[{Q2[q]}:{Q2[q]+3}], v[{Sb[q]}:{Sb[q]+15}]")
    def mf_pv(u, h):
        t, q = u // 2, u % 2
        k(f"v_mfma_f32_32x32x16_bf16 v[{OA[q]}:{OA[q]+15}], v[{V[t%2][h]}:{V[t%2][h]+3}], v[{P+4*h}:{P+4*h+3}], v[{OA[q]}:{OA[q]+15}]")
    def ex(u, lo, hi):
        for i in range(lo, hi): k(f"v_exp_f32 v{Sb[u%2]+i}, v{Sb[u%2]+i}")
    def cv(u, lo, hi):
        for i in range(lo, hi): k(f"v_cvt_pk_bf16_f32 v{P+i}, v{Sb[u%2]+2*i}, v{Sb[u%2]+2*i+1}")
    def side_issue():
        k(f"""
        s_mov_b32 m0, s78
        s_nop 0
        buffer_load_dwordx4 v{AD}, s[8:11], s79 offen lds
        buffer_load_dwordx4 v[{CF}:{CF+3}], v{AC}, s[44:47], s41 offen
        s_add_u32 s79, s79, {32*9216}
        s_add_u32 s41, s41, 64
        """)
    k.stamp(0)
    def fill():
        rdK(0); rdV(0); rdK(1)
        ds.need((K1[0], 4), (K2[0], 2))
        mf_qk1(0); mf_qk2(0)
        k.nop(10)
    fill()
    def check():
        for q, n in ((0, N0), (1, N1)):
            for i in range(4): k(f"v_dot2c_f32_bf16 v{n}, v{Q1[q]+i}, v{Q1[q]+i}")
            k(f"v_dot2c_f32_bf16 v{n}, v{Q2[q]}, v{Q2[q]}")
        k(f"v_max_f32 v{X+2}, v{X+2}, v{X+3}")
        k.nop(3)
        k(f"ds_bpermute_b32 v{X+7}, v{BP}, v{N0}\nds_bpermute_b32 v{X+8}, v{BP}, v{N1}")
        for sh in (1, 2, 4, 8):
            for r in (X, X + 1, X + 2):
                k(f"v_max_f32_dpp v{r}, v{r}, v{r} row_ror:{sh} row_mask:0xf bank_mask:0xf")
        k.nop(1)
        for i, r in enumerate((X, X + 1, X + 2)):
            for j in range(2):
                k(f"v_readlane_b32 s{52+2*i+j}, v{r}, {16*j}")
        k("s_nop 3")
        for i in range(3):
            k(f"s_max_u32 s{52+2*i}, s{52+2*i}, s{53+2*i}")
        k(f"""
        v_mov_b32 v{X+9}, s52
        v_add_f32 v{X+9}, s54, v{X+9}
        s_waitcnt lgkmcnt(0)
        v_add_f32 v{N0}, v{N0}, v{X+7}
        v_add_f32 v{N1}, v{N1}, v{X+8}
        v_max_f32 v{N0}, v{N0}, v{N1}
        v_mul_f32 v{N0}, v{N0}, v{X+9}
        s_mov_b32 s40, {fhex(3600.0)}
        v_cmp_nge_f32 vcc, s40, v{N0}
        s_nop 3
        s_cmp_lg_u64 vcc, 0
        s_cselect_b32 s48, 1, 0
        s_cmp_gt_u32 s56, {fhex(2.0**40)}
        s_cselect_b32 s48, 1, s48
        """)

    check()
    head = [min(x) for x in ds.fifo]
    def body(kind):
        assert [min(x) for x in ds.fifo] == head, ([min(x) for x in ds.fifo], head)
        for u in range(4):
            t, q = u // 2, u % 2
            tn = (u + 1) // 2
            if PRIO: k(f"s_setprio {3-u}")
            ds.need((K1[tn % 2], 4))
            mf_qk1(u + 1)
            ex(u, 0, 4)
            mf_pv(u - 1, 1)
            if q == 0: rdV(t + 1)
            ex(u, 4, 8)
            if kind == "dma": dma1()
            if kind == "warm":
                k(f"buffer_load_dwordx4 v[{X+4*u}:{X+3+4*u}], v7, s[72:75], s76 offen offset:{1024*(u%2)}")
                if q == 1:
                    k(f"""
                    s_add_u32 s76, s76, 2048
                    s_sub_u32 s71, s71, 1
                    s_cmp_eq_u32 s71, 7
                    s_cselect_b32 s72, s66, s72
                    s_cselect_b32 s73, s67, s73
                    s_cselect_b32 s76, s70, s76
                    s_cmp_eq_u32 s71, 4
                    s_cselect_b32 s72, s68, s72
                    s_cselect_b32 s73, s69, s73
                    s_cselect_b32 s76, s70, s76
                    """)
            if kind == "side" and q == 0:
                k(f"""
                s_waitcnt vmcnt(0)
                ds_read_b64_tr_b16 v[{WF}:{WF+1}], v{AT_}
                ds_read_b64_tr_b16 v[{WF+2}:{WF+3}], v{AT_} offset:128
                """)
            ds.need((K2[tn % 2], 2))
            ds.need((V[t % 2][0], 8))
            cv(u, 0, 4)
            mf_qk2(u + 1)
            if q == 0: rdK(t + 2)
            ex(u, 8, 12)
            mf_pv(u, 0)
            if kind == "side" and q == 0:
                k("s_waitcnt lgkmcnt(0)")
                k(f"v_mfma_f32_16x16x32_bf16 v[{CA}:{CA+3}], v[{WF}:{WF+3}], v[{CF}:{CF+3}], v[{CA}:{CA+3}]")
                side_issue()
            ex(u, 12, 16)
            if u == 3:
                for A_ in (AK1, AK2, AV):
                    k(f"v_add_u32 v{A_}, {2*KV_TILE}, v{A_}")
                k("s_sub_u32 s40, s40, 1\ns_cmp_lg_u32 s40, 0")
            elif not PRIO:
                k("s_nop 0")
            cv(u, 4, 8)
        if PRIO: k("s_barrier")
    def loop(kind, n, name):
        if n: k(f"s_mov_b32 s40, {n}")
        k(f".p2align 6\n{name}:")
        body(kind)
        k(f"s_cbranch_scc1 {name}")
    loop("dma", 2, "L_k3_l1")
    k("s_waitcnt vmcnt(4)\ns_barrier")
    loop("dma", 2, "L_k3_l2")
    k("s_mov_b32 s40, 1\ns_mov_b32 s43, 2\ns_branch L_k3_plain")
    k("L_k3_b2:\ns_waitcnt vmcnt(0)\ns_barrier")
    k.stamp(2)
    k("s_mov_b32 s43, 0\ns_cmp_ge_u32 s3, 4\ns_cbranch_scc1 L_k3_w")
    k("s_mov_b32 s40, 11")
    if not NOSIDE:
        k("s_cmp_eq_u32 s50, 0\ns_cbranch_scc1 L_k3_plain\ns_mov_b32 s40, 1\ns_mov_b32 s43, 1")
    k("s_branch L_k3_plain")
    k("L_k3_w:")
    if os.environ.get("K3_TLB"):
        k.srd(60, 20, WS_USED - O, O)
        k(f"""
        s_lshr_b32 s18, s2, 3
        s_lshl_b32 s18, s18, 2
        s_add_u32 s18, s18, s4
        s_lshl_b32 s18, s18, 22
        v_lshlrev_b32 v{X+15}, 16, v1
        buffer_load_dword v{X+15}, v{X+15}, s[60:63], s18 offen
        """)
    if WARM:
        k("s_mov_b32 s71, 10")
        loop("warm", 5, "L_k3_lw")
        k("s_mov_b32 s40, 6")
    else:
        k("s_mov_b32 s40, 11")
    k("L_k3_plain:")
    loop("plain", 0, "L_k3_lp")
    k("s_cmp_eq_u32 s43, 0\ns_cbranch_scc1 L_k3_done")
    k("s_cmp_eq_u32 s43, 2\ns_cbranch_scc1 L_k3_b2")
    k("s_cmp_eq_u32 s43, 3\ns_cbranch_scc1 L_k3_ls1")
    side_issue()
    k("s_mov_b32 s43, 3\ns_mov_b32 s40, 1\ns_branch L_k3_plain\nL_k3_ls1:")
    loop("side", 9, "L_k3_ls")
    k("L_k3_done:")
    k("s_waitcnt lgkmcnt(0)")
    mf_pv(3, 1)
    k("s_cmp_eq_u32 s48, 0\ns_cbranch_scc1 L_k3_fin\ns_mov_b32 s48, 0")
    k.nop(12)
    k(f"""
    v_mov_b32 v{X}, 0xff7fffff
    v_mov_b32 v{X+1}, 0xff7fffff
    v_mov_b32 v{X+2}, v7
    v_subrev_u32 v{X+3}, s7, v{AK2}
    v_subrev_u32 v{X+3}, {HALF}, v{X+3}
    s_mov_b32 s40, 0
    L_k3_pre:
    ds_read_b128 v[{K1[0]}:{K1[0]+3}], v{X+2}
    ds_read_b64 v[{K2[0]}:{K2[0]+1}], v{X+3}
    v_add_u32 v{X+2}, {KV_TILE}, v{X+2}
    v_add_u32 v{X+3}, {KV_TILE}, v{X+3}
    s_waitcnt lgkmcnt(0)
    """)
    for q in range(2):
        k(f"v_mfma_f32_32x32x16_bf16 v[{Sb[q]}:{Sb[q]+15}], v[{K1[0]}:{K1[0]+3}], v[{Q1[q]}:{Q1[q]+3}], 0")
        k(f"v_mfma_f32_32x32x16_bf16 v[{Sb[q]}:{Sb[q]+15}], v[{K2[0]}:{K2[0]+3}], v[{Q2[q]}:{Q2[q]+3}], v[{Sb[q]}:{Sb[q]+15}]")
    k("s_nop 12")
    for q in range(2):
        for i in range(0, 16, 2):
            k(f"v_max3_f32 v{X+q}, v{Sb[q]+i}, v{Sb[q]+i+1}, v{X+q}")
    k(f"""
    s_add_u32 s40, s40, 1
    s_cmp_lt_u32 s40, 64
    s_cbranch_scc1 L_k3_pre
    v_xor_b32 v{BP}, 32, v1
    v_lshlrev_b32 v{BP}, 2, v{BP}
    v_cmp_eq_u32 vcc, 0, v4
    ds_bpermute_b32 v{X+2}, v{BP}, v{X}
    ds_bpermute_b32 v{X+3}, v{BP}, v{X+1}
    s_waitcnt lgkmcnt(0)
    """)
    for q in range(2):
        k(f"""
        v_max_f32 v{X+q}, v{X+q}, v{X+2+q}
        v_sub_f32 v{X+q}, 0, v{X+q}
        v_cvt_pk_bf16_f32 v{X+4}, v{X+q}, v{X+q}
        v_lshlrev_b32 v{X+4}, 16, v{X+4}
        v_sub_f32 v{X+5}, v{X+q}, v{X+4}
        v_cvt_pk_bf16_f32 v{X+4}, v{X+4}, v{X+5}
        v_cndmask_b32 v{Q2[q]+1}, 0, v{X+4}, vcc
        """)
    for q in range(2):
        for i in range(16): k(f"v_mov_b32 v{OA[q]+i}, 0")
    for i in range(4):
        k(f"v_mov_b32 v{P+4+i}, 0\nv_mov_b32 v{V[1][1]+i}, 0")
    for A_ in (AK1, AK2, AV):
        k(f"v_subrev_u32 v{A_}, {HALF}, v{A_}")
    ds.fifo = []
    fill()
    k("s_mov_b32 s43, 0\ns_mov_b32 s40, 16\ns_branch L_k3_plain")
    k("L_k3_fin:")
    k.nop(12)
    k.stamp(1)
    k(f"""
    s_setprio 0
    s_barrier
    s_lshl_b32 s40, s3, 12
    v_add_u32 v{X}, s40, v7
    s_xor_b32 s40, s3, 4
    s_lshl_b32 s40, s40, 12
    v_add_u32 v{X+1}, s40, v7
    s_cmp_eq_u32 s5, 0
    s_cbranch_scc1 L_k3_h0
    """)
    for i in range(12):
        k(f"v_swap_b32 v{OA[0]+i}, v{OA[1]+i}")
    k("s_mov_b32 s22, s6\nL_k3_h0:")
    for i in range(3):
        k(f"ds_write_b128 v{X}, v[{OA[1]+4*i}:{OA[1]+4*i+3}] offset:{1024*i}")
    k("s_waitcnt lgkmcnt(0)\ns_barrier")
    for i in range(3):
        k(f"ds_read_b128 v[{OA[1]+4*i}:{OA[1]+4*i+3}], v{X+1} offset:{1024*i}")
    k.srd(12, 20, CS_SZ, CS)
    k(f"""
    v_lshlrev_b32 v{X+2}, 2, v3
    v_mul_u32_u24 v5, 36, v3
    v_lshl_add_u32 v5, v4, 3, v5
    s_waitcnt lgkmcnt(0)
    """)
    O_ = OA[0]
    for i in range(11):
        k(f"v_add_f32 v{O_+i}, v{O_+i}, v{OA[1]+i}")
    k(f"""
    ds_bpermute_b32 v{X+3}, v{X+2}, v{O_+10}
    s_waitcnt lgkmcnt(0)
    v_rcp_f32 v{X+3}, v{X+3}
    s_nop 0
    """)
    for i in range(10):
        k(f"v_mul_f32 v{O_+i}, v{O_+i}, v{X+3}")
    for i in range(5):
        k(f"v_cvt_pk_bf16_f32 v{P+i}, v{O_+2*i}, v{O_+2*i+1}")
    k(f"""
    buffer_store_dwordx2 v[{P}:{P+1}], v5, s[36:39], s22 offen
    buffer_store_dwordx2 v[{P+2}:{P+3}], v5, s[36:39], s22 offen offset:16
    v_cmp_eq_u32 vcc, 0, v4
    s_and_saveexec_b64 s[42:43], vcc
    buffer_store_dword v{P+4}, v5, s[36:39], s22 offen offset:32
    s_mov_b64 exec, s[42:43]
    s_cmp_eq_u32 s50, 0
    s_cbranch_scc1 L_k3_end
    s_cmp_ge_u32 s3, 4
    s_cbranch_scc1 L_k3_end
    s_lshl_b32 s40, s51, 1
    s_mul_i32 s40, s40, {F*4}
    s_lshl_b32 s41, s77, 6
    s_add_u32 s40, s40, s41
    v_and_b32 v{WF}, 15, v1
    v_lshrrev_b32 v{WF+1}, 4, v1
    s_movk_i32 s41, {F*4}
    v_mul_lo_u32 v{WF+2}, v{WF}, s41
    v_lshl_add_u32 v{WF+2}, v{WF+1}, 4, v{WF+2}
    v_cmp_gt_u32 vcc, 2, v{WF}
    s_and_saveexec_b64 s[42:43], vcc
    buffer_store_dwordx4 v[{CA}:{CA+3}], v{WF+2}, s[12:15], s40 offen
    L_k3_end:
    s_endpgm
    """)
    return k
```

```python
import os
from fw import *
from layout import *
from k1 import bf16r, LOG2E

def gen_k5():
    NW = 12
    STG = 36864
    NST = 18
    AUX = 4 * STG
    k = Kern("ffn1_kernel", 256, NW * 64, 4 * STG + 12288, 168)
    DM = [0, 1, 2]
    AT = [3, 4]; AW = [5, 6]; LN16 = 7
    C1 = 8; C2 = 12
    W = 16; T = [40, 56]; ACC = 72
    def acc(wf, tf): return ACC + 4 * (wf * 4 + tf)
    RA, RB = [int(x) for x in os.environ.get("K5_ROT", "0,0").split(",")]
    k("""
    s_load_dwordx4 s[8:11], s[0:1], 48
    s_load_dwordx2 s[20:21], s[0:1], 104
    v_and_b32 v1, 63, v0
    v_lshrrev_b32 v2, 6, v0
    v_lshlrev_b32 v7, 4, v1
    v_readfirstlane_b32 s3, v2
    s_cmp_ge_u32 s2, 256
    s_cbranch_scc1 L_k5_end
    s_and_b32 s22, s2, 7
    s_lshl_b32 s22, s22, 2
    s_lshr_b32 s23, s2, 3
    s_and_b32 s24, s23, 3
    s_add_u32 s22, s22, s24
    s_lshr_b32 s23, s23, 2
    s_and_b32 s24, s3, 3
    s_lshr_b32 s25, s3, 2
    s_lshl_b32 s26, s23, 8
    s_mul_i32 s27, s22, 144
    v_and_b32 v160, 15, v1
    v_lshrrev_b32 v161, 4, v1
    s_waitcnt lgkmcnt(0)
    """)
    k(f"""
    s_cmp_ge_u32 s3, 3
    s_cbranch_scc1 L_k5_noaux
    s_mov_b32 s28, {ST2}
    s_mov_b32 s30, {ST2_SZ}
    s_cmp_eq_u32 s3, 2
    s_cselect_b32 s28, {CS}, s28
    s_cselect_b32 s30, {CS_SZ}, s30
    s_add_u32 s28, s20, s28
    s_addc_u32 s29, s21, 0
    s_mov_b32 s31, 0x20000
    s_lshl_b32 s40, s26, 5
    s_lshl_b32 s41, s3, 12
    s_add_u32 s40, s40, s41
    s_lshl_b32 s42, s27, 2
    s_movk_i32 s43, 1024
    s_cmp_eq_u32 s3, 2
    s_cselect_b32 s40, s42, s40
    s_cselect_b32 s43, {F*4}, s43
    s_add_u32 s41, s41, {AUX}
    """)
    for i in range(4):
        k(f"s_add_u32 m0, s41, {1024*i}\ns_nop 0\nbuffer_load_dwordx4 v7, s[28:31], s40 offen lds\ns_add_u32 s40, s40, s43")
    k("L_k5_noaux:")
    for q in range(3):
        sr = 44 + 4 * q
        la, lb = k.label("dmaw"), k.label("dmad")
        dst = (166, 159, 2)[q]
        k(f"""
        s_mul_i32 s66, s3, 3
        s_add_u32 s66, s66, {q}
        s_lshl_b32 s{62+q}, s66, 10
        s_mov_b32 s{sr+3}, 0x20000
        s_cmp_ge_u32 s66, 16
        s_cbranch_scc1 {la}
        s_add_u32 s{sr}, s20, {X1P}
        s_addc_u32 s{sr+1}, s21, 0
        s_mov_b32 s{sr+2}, {X1P_SZ}
        s_lshl_b32 s{56+q}, s23, 14
        s_add_u32 s{56+q}, s{56+q}, s{62+q}
        s_mov_b32 s{59+q}, {8*16384}
        v_lshlrev_b32 v{dst}, 4, v1
        s_branch {lb}
        {la}:
        s_cmp_ge_u32 s66, 26
        s_cselect_b32 s{sr}, s10, s8
        s_cselect_b32 s{sr+1}, s11, s9
        s_cselect_b32 s67, 26, 16
        s_mov_b32 s{sr+2}, 5308416
        s_lshl_b32 s{56+q}, s27, 1
        s_mov_b32 s{59+q}, {32*9216}
        s_sub_u32 s67, s66, s67
        s_lshl_b32 s67, s67, 6
        v_add_u32 v164, s67, v1
        v_mul_u32_u24 v165, 863, v164
        v_lshrrev_b32 v165, 17, v165
        v_mul_u32_u24 v167, 152, v165
        v_sub_u32 v164, v164, v167
        v_min_u32 v164, 143, v164
        v_min_u32 v165, 3, v165
        v_mul_u32_u24 v167, 3641, v164
        v_lshrrev_b32 v167, 16, v167
        v_lshl_add_u32 v165, v165, 3, v167
        v_mul_u32_u24 v167, 18, v167
        v_sub_u32 v164, v164, v167
        v_mul_u32_u24 v165, 9216, v165
        v_lshl_add_u32 v{dst}, v164, 4, v165
        {lb}:
        """)
    k("""
    v_bfe_u32 v158, v1, 2, 2
    v_and_b32 v157, 3, v1
    v_mov_b32 v0, v166
    v_mov_b32 v1, v159
    s_mov_b32 s68, 0
    """)
    def dma1(q):
        k(f"s_add_u32 m0, s{62+q}, s68")
        k("s_nop 0")
        k(f"buffer_load_dwordx4 v{DM[q]}, s[{44+4*q}:{47+4*q}], s{56+q} offen lds")
        k(f"s_add_u32 s{56+q}, s{56+q}, s{59+q}")
        if q == 2:
            k(f"s_add_u32 s68, s68, {STG}\ns_cmp_eq_u32 s68, {4*STG}\ns_cselect_b32 s68, 0, s68")
    for q in range(6): dma1(q % 3)
    k.stamp(3)
    k(f"""
    v_lshrrev_b32 v164, 2, v160
    v_sub_u32 v164, 4, v164
    v_xor_b32 v164, v164, v161
    v_and_b32 v164, 3, v164
    s_lshl_b32 s66, s24, 12
    v_lshlrev_b32 v{AT[0]}, 6, v160
    v_lshl_add_u32 v{AT[0]}, v164, 4, v{AT[0]}
    v_add_u32 v{AT[0]}, s66, v{AT[0]}
    v_add_u32 v{AT[1]}, {2*STG}, v{AT[0]}
    v_lshl_add_u32 v164, v161, 3, v158
    v_mul_u32_u24 v164, 288, v164
    v_lshl_add_u32 v164, v161, 7, v164
    v_lshl_add_u32 v164, v157, 3, v164
    s_mul_i32 s66, s25, 96
    v_add_u32 v{AW[0]}, s66, v164
    v_add_u32 v{AW[1]}, {2*STG}, v{AW[0]}
    s_lshl_b32 s66, s24, 11
    s_add_u32 s66, s66, {AUX}
    v_lshlrev_b32 v162, 5, v160
    v_add_u32 v162, s66, v162
    s_mul_i32 s66, s25, 192
    s_add_u32 s66, s66, {AUX + 8192}
    v_lshlrev_b32 v163, 4, v161
    v_add_u32 v163, s66, v163
    s_waitcnt vmcnt(6)
    s_barrier
    """)
    for tf in range(4):
        k(f"ds_read_b128 v[{T[0]+8*tf}:{T[0]+8*tf+3}], v162 offset:{512*tf}")
        k(f"ds_read_b128 v[{T[0]+8*tf+4}:{T[0]+8*tf+7}], v162 offset:{512*tf+16}")
    k("s_waitcnt lgkmcnt(0)")
    for mat in range(2):
        for vec in range(2):
            for ft in range(3):
                wf = 2 * ft + mat
                dst = acc(wf, 1) if vec == 0 else acc(wf, 0)
                k(f"ds_read_b128 v[{dst}:{dst+3}], v163 offset:{(2*mat+vec)*1024 + 64*ft}")
    NMU, SD = T[1] + 8, T[1] + 12
    steps = [
        "v_add_f32 v{b}, v{b}, v{b2}", "v_add_f32 v{b4}, v{b4}, v{b6}", "v_add_f32 v{b1}, v{b1}, v{b3}", "v_add_f32 v{b5}, v{b5}, v{b7}",
        "v_add_f32 v{b}, v{b}, v{b4}", "v_add_f32 v{b1}, v{b1}, v{b5}",
        "v_mul_f32 v{b}, " + fhex(-1/576) + ", v{b}", "v_mul_f32 v{b1}, " + fhex(1/576) + ", v{b1}",
        "v_fma_f32 v{b1}, -v{b}, v{b}, v{b1}", "v_max_f32 v{b1}, 0, v{b1}",
        "v_cvt_pk_bf16_f32 v{b2}, v{b}, v{b}", "v_cvt_pk_bf16_f32 v{b1}, v{b1}, v{b1}",
        "v_lshlrev_b32 v{m}, 16, v{b2}", "v_lshlrev_b32 v{b1}, 16, v{b1}",
        "v_add_f32 v{b1}, " + fhex(1e-5) + ", v{b1}", "v_cvt_pk_bf16_f32 v{b1}, v{b1}, v{b1}", "v_lshlrev_b32 v{b1}, 16, v{b1}",
        "v_sqrt_f32 v{b1}, v{b1}", "v_cvt_pk_bf16_f32 v{b1}, v{b1}, v{b1}", "v_lshlrev_b32 v{sd}, 16, v{b1}",
        "v_rcp_f32 v{b3}, v{sd}", "v_mul_f32 v{c1}, " + fhex(-LOG2E) + ", v{b3}", "v_mul_f32 v{c2}, v{b3}, v{b3}"]
    for stp in steps:
        for tf in range(4):
            b = T[0] + 8 * tf
            k(stp.format(b=b, b1=b+1, b2=b+2, b3=b+3, b4=b+4, b5=b+5, b6=b+6, b7=b+7, m=160+tf, sd=164+tf, c1=C1+tf, c2=C2+tf))
    for i in range(4):
        k(f"v_mov_b32 v{NMU+i}, v{160+i}\nv_mov_b32 v{SD+i}, v{164+i}")
    k("s_waitcnt vmcnt(3) lgkmcnt(0)\ns_barrier")
    TT = T[1]
    def init_code(wf):
        c2, c1 = acc(wf, 0), acc(wf, 1)
        out = []
        for tf in (3, 2):
            for r in range(4): out.append(f"v_mul_f32 v{acc(wf,tf)+r}, v{c2+r}, v{SD+tf}")
            for r in range(4): out.append(f"v_fmac_f32 v{acc(wf,tf)+r}, v{NMU+tf}, v{c1+r}")
        for r in range(4): out.append(f"v_mul_f32 v{TT+r}, v{c2+r}, v{SD+1}")
        for r in range(4): out.append(f"v_mul_f32 v{c2+r}, v{c2+r}, v{SD}")
        for r in range(4): out.append(f"v_fmac_f32 v{c2+r}, v{NMU}, v{c1+r}")
        for r in range(4): out.append(f"v_fma_f32 v{c1+r}, v{NMU+1}, v{c1+r}, v{TT+r}")
        return out
    ds = DSTrack(k)
    def rdT(p):
        a = AT[p >> 1]; o = (p & 1) * STG
        for tf in range(4):
            b = T[p % 2] + 4 * tf
            ds.read(f"ds_read_b128 v[{b}:{b+3}], v{a} offset:{o + 1024*tf}", b, 4)
    def rdW(p, wf):
        a = AW[p >> 1]; o = (p & 1) * STG
        ft, mat = wf // 2, wf % 2
        for j in range(2):
            b = W + 4 * wf + 2 * j
            ds.read(f"ds_read_b64_tr_b16 v[{b}:{b+1}], v{a} offset:{o + 16384 + mat*10240 + j*1152 + ft*32}", b, 2)
    k.stamp(0)
    rdT(0)
    for wf in range(6): rdW(0, wf)
    head = [min(x) for x in ds.fifo]
    MID = int(os.environ.get("K5_MID", "1"))
    def stage(p, sync, dma, nxt, first=False):
        mid = 5 if first else MID
        for wf in range(6):
            if wf == mid:
                if sync is not None: k(f"s_waitcnt vmcnt({sync})\ns_barrier")
                if nxt:
                    rdT(p + 1)
                    for w2 in range(mid): rdW(p + 1, w2)
            ds.need((W + 4 * wf, 4), (T[p % 2], 16))
            fill = init_code(wf + 1) if first and wf < 5 else []
            for tf in (3, 2, 1, 0) if first else range(4):
                a = acc(wf, tf)
                t = T[p % 2] + 4 * tf
                k(f"v_mfma_f32_16x16x32_bf16 v[{a}:{a+3}], v[{W+4*wf}:{W+4*wf+3}], v[{t}:{t+3}], v[{a}:{a+3}]")
                for x in fill[:8]: k(x)
                fill = fill[8:]
            if first and wf < 5: k("s_nop 1")
            if nxt and wf >= mid: rdW(p + 1, wf)
            if first:
                if wf < 3: dma1(wf)
                if wf == 5:
                    for q in range(3): dma1(q)
            elif dma and wf >= 3: dma1(wf - 3)
    def swap():
        k(f"v_swap_b32 v{AT[0]}, v{AT[1]}\nv_swap_b32 v{AW[0]}, v{AW[1]}")
    for x in init_code(0): k(x)
    k("s_nop 1")
    stage(0, 3, True, True, first=True)
    stage(1, 3, True, True)
    swap()
    assert [min(x) for x in ds.fifo] == head
    k("s_mov_b32 s40, 6\n.p2align 6\nL_k5_loop:")
    stage(0, 3, True, True)
    stage(1, 3, True, True)
    swap()
    assert [min(x) for x in ds.fifo] == head
    k("s_sub_u32 s40, s40, 1\ns_cmp_lg_u32 s40, 0\ns_cbranch_scc1 L_k5_loop")
    stage(0, 3, True, True)
    stage(1, 0, False, True)
    swap()
    stage(0, None, False, True)
    stage(1, None, False, False)
    k.nop(8)
    k.stamp(2)
    k.srd(28, 20, FLG_SZ, FLG)
    k(f"""
    s_cmp_ge_u32 s2, 64
    s_cbranch_scc1 L_k5_nf
    s_cmp_lg_u32 s3, 0
    s_cbranch_scc1 L_k5_nf
    v_mov_b32 v16, 0
    v_mov_b32 v17, 0
    v_mov_b32 v18, 0
    v_mov_b32 v19, 0
    s_lshl_b32 s40, s2, 8
    s_mov_b64 exec, 1
    buffer_store_dwordx4 v[16:19], v16, s[28:31], s40 offen sc1
    s_mov_b64 exec, -1
    s_nop 1
    L_k5_nf:
    """)
    k.srd(28, 20, ACT_SZ, ACT)
    k(f"""
    s_lshl_b32 s41, s23, 3
    s_lshl_b32 s42, s24, 1
    s_add_u32 s41, s41, s42
    s_lshl_b32 s41, s41, 12
    s_mul_i32 s42, s22, 9
    s_mul_i32 s43, s25, 3
    s_add_u32 s42, s42, s43
    """)
    E = 16
    ST = os.environ.get('K5_ST', ' sc1')
    for ft in range(3):
        k(f"""
        s_add_u32 s43, s42, {ft}
        s_lshr_b32 s44, s43, 2
        s_lshl_b32 s44, s44, 18
        s_and_b32 s43, s43, 3
        s_lshl_b32 s43, s43, 10
        s_add_u32 s44, s44, s43
        s_add_u32 s44, s44, s41
        s_add_u32 s45, s44, 4096
        """)
        for pr in range(2):
            o = E + 32 + 4 * ((ft * 2 + pr) % 4)
            for half in range(2):
                tf = 2 * pr + half
                a, b = acc(2 * ft, tf), acc(2 * ft + 1, tf)
                e = E + 8 * half
                for r in range(4): k(f"v_mul_f32 v{e+r}, v{C1+tf}, v{a+r}")
                for r in range(4): k(f"v_exp_f32 v{e+r}, v{e+r}")
                for r in range(4): k(f"v_mul_f32 v{e+4+r}, v{a+r}, v{b+r}")
                for r in range(4): k(f"v_add_f32 v{e+r}, 1.0, v{e+r}")
                for r in range(4): k(f"v_rcp_f32 v{e+r}, v{e+r}")
                for r in range(4): k(f"v_mul_f32 v{e+4+r}, v{C2+tf}, v{e+4+r}")
                for r in range(4): k(f"v_mul_f32 v{e+4+r}, v{e+4+r}, v{e+r}")
                k(f"v_cvt_pk_bf16_f32 v{o+2*half}, v{e+4}, v{e+5}")
                k(f"v_cvt_pk_bf16_f32 v{o+2*half+1}, v{e+6}, v{e+7}")
            k.nop(2)
            k(f"v_permlane16_swap_b32 v{o}, v{o+2}")
            k(f"v_permlane16_swap_b32 v{o+1}, v{o+3}")
            k(f"buffer_store_dwordx4 v[{o}:{o+3}], v{LN16}, s[28:31], s{44+pr} offen{ST}")
    k("L_k5_end:\ns_endpgm")
    return k
```

```python
import os
from fw import *
from layout import *

def gen_k3():
    k = Kern("attn_kernel", 256, 512, 163840, 168)
    HALF = 32 * KV_TILE
    Q1 = [8, 16]; Q2 = [12, 20]
    K1 = [24, 28]; K2 = [32, 36]
    V = [[40, 44], [48, 52]]
    Sb = [56, 72]
    P = 88
    OA = [96, 112]
    AK1, AK2, AV = 128, 129, 130
    CF, WF, CA, AD, AT_, AC = 132, 136, 140, 144, 145, 146
    X = 148
    WARM = os.environ.get("K3_WARM", "gud")
    NOSIDE = os.environ.get("K3_NOSIDE")
    PRIO = os.environ.get("K3_PRIO", "")
    VZ = os.environ.get("K3_VZ", "1") == "1"
    k(f"""
    s_load_dwordx2 s[20:21], s[0:1], 104
    s_load_dwordx4 s[64:67], s[0:1], 48
    s_load_dwordx2 s[68:69], s[0:1], 64
    v_and_b32 v1, 63, v0
    v_lshrrev_b32 v2, 6, v0
    v_lshlrev_b32 v7, 4, v1
    v_readfirstlane_b32 s3, v2
    s_cmp_ge_u32 s2, 256
    s_cbranch_scc1 L_k3_end
    s_and_b32 s4, s3, 3
    s_lshr_b32 s5, s3, 2
    s_lshl_b32 s22, s2, 3
    s_lshl_b32 s6, s4, 1
    s_add_u32 s22, s22, s6
    s_mul_i32 s22, s22, 1152
    s_add_u32 s6, s22, 1152
    v_and_b32 v3, 31, v1
    v_lshrrev_b32 v4, 5, v1
    v_mul_u32_u24 v6, 36, v3
    v_lshl_add_u32 v5, v4, 4, v6
    s_mul_i32 s7, s5, {HALF}
    s_lshl_b32 s23, s4, 10
    s_add_u32 s23, s23, s7
    s_waitcnt lgkmcnt(0)
    """)
    k.srd(24, 20, Q_SZ, Q)
    k.srd(28, 20, KMAX_SZ, KMAX)
    k.srd(32, 20, KV_SZ, KV)
    k.srd(36, 20, O_SZ, O)
    k(f"""
    buffer_load_dwordx4 v[{Q1[0]}:{Q1[0]+3}], v5, s[24:27], s22 offen
    buffer_load_dword v{Q2[0]}, v6, s[24:27], s22 offen offset:32
    buffer_load_dwordx4 v[{Q1[1]}:{Q1[1]+3}], v5, s[24:27], s6 offen
    buffer_load_dword v{Q2[1]}, v6, s[24:27], s6 offen offset:32
    buffer_load_dwordx4 v[{X}:{X+3}], v7, s[28:31], 0 offen
    s_mov_b32 s49, s23
    """)
    def dma1():
        k("s_mov_b32 m0, s49\ns_nop 0\nbuffer_load_dwordx4 v7, s[32:35], s49 offen lds\ns_add_u32 s49, s49, 4096")
    for j in range(4): dma1()
    k(f"""
    v_add_u32 v{AK1}, s7, v7
    v_lshlrev_b32 v{AK2}, 3, v3
    v_add_u32 v{AK2}, 1024, v{AK2}
    v_add_u32 v{AK2}, s7, v{AK2}
    v_subrev_u32 v{X+4}, 20, v3
    v_subrev_u32 v{X+5}, 12, v3
    v_cmp_gt_u32 vcc, 24, v3
    s_nop 1
    v_cndmask_b32 v{X+4}, v{X+5}, v{X+4}, vcc
    v_min_u32 v{X+4}, 18, v{X+4}
    v_cmp_gt_u32 vcc, 19, v3
    s_nop 1
    v_cndmask_b32 v{X+4}, v{X+4}, v3, vcc
    v_mul_u32_u24 v{AV}, 304, v4
    v_lshl_add_u32 v{AV}, v{X+4}, 4, v{AV}
    v_add_u32 v{AV}, 1280, v{AV}
    v_add_u32 v{AV}, s7, v{AV}
    """)
    for q in range(2):
        for r in (1, 2, 3): k(f"v_mov_b32 v{Q2[q]+r}, 0")
        for r in (2, 3): k(f"v_mov_b32 v{K2[q]+r}, 0")
        for i in range(16): k(f"v_mov_b32 v{OA[q]+i}, 0")
    for i in range(4):
        k(f"v_mov_b32 v{P+4+i}, 0\nv_mov_b32 v{V[1][1]+i}, 0\nv_mov_b32 v{CA+i}, 0")
    k(f"""
    s_cmp_lt_u32 s2, 144
    s_cselect_b32 s50, 1, 0
    s_cmp_ge_u32 s2, 72
    s_cselect_b32 s51, 1, 0
    s_cselect_b32 s8, s66, s64
    s_cselect_b32 s9, s67, s65
    s_mov_b32 s10, 5308416
    s_mov_b32 s11, 0x20000
    s_mul_i32 s77, s51, 72
    s_sub_u32 s77, s2, s77
    s_lshl_b32 s77, s77, 2
    s_add_u32 s77, s77, s4
    s_lshl_b32 s79, s77, 5
    s_lshl_b32 s78, s4, 10
    s_add_u32 s78, s78, {64*KV_TILE}
    v_lshrrev_b32 v{AD}, 1, v1
    s_movk_i32 s40, 9216
    v_mul_lo_u32 v{AD}, v{AD}, s40
    v_and_b32 v{AT_}, 1, v1
    v_lshl_add_u32 v{AD}, v{AT_}, 4, v{AD}
    v_lshrrev_b32 v{AC}, 4, v1
    v_bfe_u32 v{AT_}, v1, 2, 2
    v_lshl_add_u32 v{AT_}, v{AC}, 3, v{AT_}
    v_lshlrev_b32 v{AT_}, 5, v{AT_}
    v_and_b32 v{CF}, 3, v1
    v_lshl_add_u32 v{AT_}, v{CF}, 3, v{AT_}
    v_add_u32 v{AT_}, s78, v{AT_}
    v_and_b32 v{CF}, 15, v1
    v_mul_u32_u24 v{CF}, 1152, v{CF}
    v_lshl_add_u32 v{AC}, v{AC}, 4, v{CF}
    s_mov_b32 s41, 0
    s_mov_b32 s18, 0
    s_lshl_b32 s76, s2, 2
    s_add_u32 s76, s76, s4
    s_mul_i32 s76, s76, 5184
    s_mov_b32 s70, s76
    s_mov_b32 s72, s64
    s_mov_b32 s73, s65
    s_mov_b32 s74, 5308416
    s_mov_b32 s75, 0x20000
    """)
    k.srd(44, 20, MODH_SZ, MODH)
    k("s_mov_b32 s58, 0x7ffff\ns_mov_b32 s59, 0x7ffff")
    for i in range(16): k(f"v_mov_b32 v{V[0][0]+i}, 0")
    N0, N1, BP = X + 4, X + 5, X + 6
    k(f"""
    s_waitcnt vmcnt(4)
    v_cmp_eq_u32 vcc, 0, v4
    v_xor_b32 v{BP}, 32, v1
    v_lshlrev_b32 v{BP}, 2, v{BP}
    v_cndmask_b32 v{Q2[0]}, 0, v{Q2[0]}, vcc
    v_cndmask_b32 v{Q2[1]}, 0, v{Q2[1]}, vcc
    v_mov_b32 v{N0}, 0
    v_mov_b32 v{N1}, 0
    """)
    k(f"""
    s_waitcnt vmcnt(0)
    s_barrier
    """)
    k("L_k3_main:")
    ds = DSTrack(k)
    def rdK(rel):
        b = rel % 2
        ds.read(f"ds_read_b128 v[{K1[b]}:{K1[b]+3}], v{AK1} offset:{rel*KV_TILE}", K1[b], 4)
        ds.read(f"ds_read_b64 v[{K2[b]}:{K2[b]+1}], v{AK2} offset:{rel*KV_TILE}", K2[b], 2)
    def rdV(rel):
        b = rel % 2
        if VZ: k("s_mov_b64 exec, s[58:59]")
        ds.read(f"ds_read_b128 v[{V[b][0]}:{V[b][0]+3}], v{AV} offset:{rel*KV_TILE}", V[b][0], 4)
        ds.read(f"ds_read_b128 v[{V[b][1]}:{V[b][1]+3}], v{AV} offset:{rel*KV_TILE+608}", V[b][1], 4)
        if VZ: k("s_mov_b64 exec, -1")
    def mf_qk1(u):
        t, q = u // 2, u % 2
        k(f"v_mfma_f32_32x32x16_bf16 v[{Sb[q]}:{Sb[q]+15}], v[{K1[t%2]}:{K1[t%2]+3}], v[{Q1[q]}:{Q1[q]+3}], 0")
    def mf_qk2(u):
        t, q = u // 2, u % 2
        k(f"v_mfma_f32_32x32x16_bf16 v[{Sb[q]}:{Sb[q]+15}], v[{K2[t%2]}:{K2[t%2]+3}], v[{Q2[q]}:{Q2[q]+3}], v[{Sb[q]}:{Sb[q]+15}]")
    def mf_pv(u, h):
        t, q = u // 2, u % 2
        k(f"v_mfma_f32_32x32x16_bf16 v[{OA[q]}:{OA[q]+15}], v[{V[t%2][h]}:{V[t%2][h]+3}], v[{P+4*h}:{P+4*h+3}], v[{OA[q]}:{OA[q]+15}]")
    def ex(u, lo, hi):
        for i in range(lo, hi): k(f"v_exp_f32 v{Sb[u%2]+i}, v{Sb[u%2]+i}")
    def cv(u, lo, hi):
        for i in range(lo, hi): k(f"v_cvt_pk_bf16_f32 v{P+i}, v{Sb[u%2]+2*i}, v{Sb[u%2]+2*i+1}")
    def side_issue():
        k(f"""
        s_mov_b32 m0, s78
        s_nop 0
        buffer_load_dwordx4 v{AD}, s[8:11], s79 offen lds
        buffer_load_dwordx4 v[{CF}:{CF+3}], v{AC}, s[44:47], s41 offen
        s_add_u32 s79, s79, {32*9216}
        s_add_u32 s41, s41, 64
        """)
    k.stamp(0)
    def fill():
        rdK(0); rdV(0); rdK(1)
        ds.need((K1[0], 4), (K2[0], 2))
        mf_qk1(0); mf_qk2(0)
        k.nop(10)
    fill()
    def check():
        for q, n in ((0, N0), (1, N1)):
            for i in range(4): k(f"v_dot2c_f32_bf16 v{n}, v{Q1[q]+i}, v{Q1[q]+i}")
            k(f"v_dot2c_f32_bf16 v{n}, v{Q2[q]}, v{Q2[q]}")
        k(f"v_max_f32 v{X+2}, v{X+2}, v{X+3}")
        k.nop(3)
        k(f"ds_bpermute_b32 v{X+7}, v{BP}, v{N0}\nds_bpermute_b32 v{X+8}, v{BP}, v{N1}")
        for sh in (1, 2, 4, 8):
            for r in (X, X + 1, X + 2):
                k(f"v_max_f32_dpp v{r}, v{r}, v{r} row_ror:{sh} row_mask:0xf bank_mask:0xf")
        k.nop(1)
        for i, r in enumerate((X, X + 1, X + 2)):
            for j in range(2):
                k(f"v_readlane_b32 s{52+2*i+j}, v{r}, {16*j}")
        k("s_nop 3")
        for i in range(3):
            k(f"s_max_u32 s{52+2*i}, s{52+2*i}, s{53+2*i}")
        k(f"""
        v_mov_b32 v{X+9}, s52
        v_add_f32 v{X+9}, s54, v{X+9}
        s_waitcnt lgkmcnt(0)
        v_add_f32 v{N0}, v{N0}, v{X+7}
        v_add_f32 v{N1}, v{N1}, v{X+8}
        v_max_f32 v{N0}, v{N0}, v{N1}
        v_mul_f32 v{N0}, v{N0}, v{X+9}
        s_mov_b32 s40, {fhex(3600.0)}
        v_cmp_nge_f32 vcc, s40, v{N0}
        s_nop 3
        s_cmp_lg_u64 vcc, 0
        s_cselect_b32 s48, 1, 0
        s_cmp_gt_u32 s56, {fhex(2.0**40)}
        s_cselect_b32 s48, 1, s48
        """)

    check()
    head = [min(x) for x in ds.fifo]
    def body(kind):
        assert [min(x) for x in ds.fifo] == head, ([min(x) for x in ds.fifo], head)
        for u in range(4):
            t, q = u // 2, u % 2
            tn = (u + 1) // 2
            if PRIO: k(f"s_setprio {3-u}")
            ds.need((K1[tn % 2], 4))
            mf_qk1(u + 1)
            ex(u, 0, 4)
            mf_pv(u - 1, 1)
            if q == 0: rdV(t + 1)
            ex(u, 4, 8)
            if kind == "dma": dma1()
            if kind == "warm":
                k(f"buffer_load_dwordx4 v[{X+4*u}:{X+3+4*u}], v7, s[72:75], s76 offen offset:{1024*(u%2)}")
                if q == 1:
                    k(f"""
                    s_add_u32 s76, s76, 2048
                    s_sub_u32 s71, s71, 1
                    s_cmp_eq_u32 s71, 7
                    s_cselect_b32 s72, s66, s72
                    s_cselect_b32 s73, s67, s73
                    s_cselect_b32 s76, s70, s76
                    s_cmp_eq_u32 s71, 4
                    s_cselect_b32 s72, s68, s72
                    s_cselect_b32 s73, s69, s73
                    s_cselect_b32 s76, s70, s76
                    """)
            if kind == "side" and q == 0:
                k(f"""
                s_waitcnt vmcnt(0)
                ds_read_b64_tr_b16 v[{WF}:{WF+1}], v{AT_}
                ds_read_b64_tr_b16 v[{WF+2}:{WF+3}], v{AT_} offset:128
                """)
            ds.need((K2[tn % 2], 2))
            ds.need((V[t % 2][0], 8))
            cv(u, 0, 4)
            mf_qk2(u + 1)
            if q == 0: rdK(t + 2)
            ex(u, 8, 12)
            mf_pv(u, 0)
            if kind == "side" and q == 0:
                k("s_waitcnt lgkmcnt(0)")
                k(f"v_mfma_f32_16x16x32_bf16 v[{CA}:{CA+3}], v[{WF}:{WF+3}], v[{CF}:{CF+3}], v[{CA}:{CA+3}]")
                side_issue()
            ex(u, 12, 16)
            if u == 3:
                for A_ in (AK1, AK2, AV):
                    k(f"v_add_u32 v{A_}, {2*KV_TILE}, v{A_}")
                k("s_sub_u32 s40, s40, 1\ns_cmp_lg_u32 s40, 0")
            elif not PRIO:
                k("s_nop 0")
            cv(u, 4, 8)
        if PRIO: k("s_barrier")
    def loop(kind, n, name):
        if n: k(f"s_mov_b32 s40, {n}")
        k(f".p2align 6\n{name}:")
        body(kind)
        k(f"s_cbranch_scc1 {name}")
    loop("dma", 2, "L_k3_l1")
    k("s_waitcnt vmcnt(4)\ns_barrier")
    loop("dma", 2, "L_k3_l2")
    k("s_mov_b32 s40, 1\ns_mov_b32 s43, 2\ns_branch L_k3_plain")
    k("L_k3_b2:\ns_waitcnt vmcnt(0)\ns_barrier")
    k.stamp(2)
    k("s_mov_b32 s43, 0\ns_cmp_ge_u32 s3, 4\ns_cbranch_scc1 L_k3_w")
    k("s_mov_b32 s40, 11")
    if not NOSIDE:
        k("s_cmp_eq_u32 s50, 0\ns_cbranch_scc1 L_k3_plain\ns_mov_b32 s40, 1\ns_mov_b32 s43, 1")
    k("s_branch L_k3_plain")
    k("L_k3_w:")
    if os.environ.get("K3_TLB"):
        k.srd(60, 20, WS_USED - O, O)
        k(f"""
        s_lshr_b32 s18, s2, 3
        s_lshl_b32 s18, s18, 2
        s_add_u32 s18, s18, s4
        s_lshl_b32 s18, s18, 22
        v_lshlrev_b32 v{X+15}, 16, v1
        buffer_load_dword v{X+15}, v{X+15}, s[60:63], s18 offen
        """)
    if WARM:
        if WARM == "d":
            k("s_mov_b32 s71, 3\ns_mov_b32 s72, s68\ns_mov_b32 s73, s69")
            loop("warm", 2, "L_k3_lw")
            k("s_mov_b32 s40, 9")
        else:
            k("s_mov_b32 s71, 10")
            loop("warm", 5, "L_k3_lw")
            k("s_mov_b32 s40, 6")
    else:
        k("s_mov_b32 s40, 11")
    k("L_k3_plain:")
    loop("plain", 0, "L_k3_lp")
    k("s_cmp_eq_u32 s43, 0\ns_cbranch_scc1 L_k3_done")
    k("s_cmp_eq_u32 s43, 2\ns_cbranch_scc1 L_k3_b2")
    k("s_cmp_eq_u32 s43, 3\ns_cbranch_scc1 L_k3_ls1")
    side_issue()
    k("s_mov_b32 s43, 3\ns_mov_b32 s40, 1\ns_branch L_k3_plain\nL_k3_ls1:")
    loop("side", 9, "L_k3_ls")
    k("L_k3_done:")
    k("s_waitcnt lgkmcnt(0)")
    mf_pv(3, 1)
    k("s_cmp_eq_u32 s48, 0\ns_cbranch_scc1 L_k3_fin\ns_mov_b32 s48, 0")
    k.nop(12)
    k(f"""
    v_mov_b32 v{X}, 0xff7fffff
    v_mov_b32 v{X+1}, 0xff7fffff
    v_mov_b32 v{X+2}, v7
    v_subrev_u32 v{X+3}, s7, v{AK2}
    v_subrev_u32 v{X+3}, {HALF}, v{X+3}
    s_mov_b32 s40, 0
    L_k3_pre:
    ds_read_b128 v[{K1[0]}:{K1[0]+3}], v{X+2}
    ds_read_b64 v[{K2[0]}:{K2[0]+1}], v{X+3}
    v_add_u32 v{X+2}, {KV_TILE}, v{X+2}
    v_add_u32 v{X+3}, {KV_TILE}, v{X+3}
    s_waitcnt lgkmcnt(0)
    """)
    for q in range(2):
        k(f"v_mfma_f32_32x32x16_bf16 v[{Sb[q]}:{Sb[q]+15}], v[{K1[0]}:{K1[0]+3}], v[{Q1[q]}:{Q1[q]+3}], 0")
        k(f"v_mfma_f32_32x32x16_bf16 v[{Sb[q]}:{Sb[q]+15}], v[{K2[0]}:{K2[0]+3}], v[{Q2[q]}:{Q2[q]+3}], v[{Sb[q]}:{Sb[q]+15}]")
    k("s_nop 12")
    for q in range(2):
        for i in range(0, 16, 2):
            k(f"v_max3_f32 v{X+q}, v{Sb[q]+i}, v{Sb[q]+i+1}, v{X+q}")
    k(f"""
    s_add_u32 s40, s40, 1
    s_cmp_lt_u32 s40, 64
    s_cbranch_scc1 L_k3_pre
    v_xor_b32 v{BP}, 32, v1
    v_lshlrev_b32 v{BP}, 2, v{BP}
    v_cmp_eq_u32 vcc, 0, v4
    ds_bpermute_b32 v{X+2}, v{BP}, v{X}
    ds_bpermute_b32 v{X+3}, v{BP}, v{X+1}
    s_waitcnt lgkmcnt(0)
    """)
    for q in range(2):
        k(f"""
        v_max_f32 v{X+q}, v{X+q}, v{X+2+q}
        v_sub_f32 v{X+q}, 0, v{X+q}
        v_cvt_pk_bf16_f32 v{X+4}, v{X+q}, v{X+q}
        v_lshlrev_b32 v{X+4}, 16, v{X+4}
        v_sub_f32 v{X+5}, v{X+q}, v{X+4}
        v_cvt_pk_bf16_f32 v{X+4}, v{X+4}, v{X+5}
        v_cndmask_b32 v{Q2[q]+1}, 0, v{X+4}, vcc
        """)
    for q in range(2):
        for i in range(16): k(f"v_mov_b32 v{OA[q]+i}, 0")
    for i in range(4):
        k(f"v_mov_b32 v{P+4+i}, 0\nv_mov_b32 v{V[1][1]+i}, 0")
    for A_ in (AK1, AK2, AV):
        k(f"v_subrev_u32 v{A_}, {HALF}, v{A_}")
    ds.fifo = []
    fill()
    k("s_mov_b32 s43, 0\ns_mov_b32 s40, 16\ns_branch L_k3_plain")
    k("L_k3_fin:")
    k.nop(12)
    k.stamp(1)
    k(f"""
    s_setprio 0
    s_barrier
    s_lshl_b32 s40, s3, 12
    v_add_u32 v{X}, s40, v7
    s_xor_b32 s40, s3, 4
    s_lshl_b32 s40, s40, 12
    v_add_u32 v{X+1}, s40, v7
    s_cmp_eq_u32 s5, 0
    s_cbranch_scc1 L_k3_h0
    """)
    for i in range(12):
        k(f"v_swap_b32 v{OA[0]+i}, v{OA[1]+i}")
    k("s_mov_b32 s22, s6\nL_k3_h0:")
    for i in range(3):
        k(f"ds_write_b128 v{X}, v[{OA[1]+4*i}:{OA[1]+4*i+3}] offset:{1024*i}")
    k("s_waitcnt lgkmcnt(0)\ns_barrier")
    for i in range(3):
        k(f"ds_read_b128 v[{OA[1]+4*i}:{OA[1]+4*i+3}], v{X+1} offset:{1024*i}")
    k.srd(12, 20, CS_SZ, CS)
    k(f"""
    v_lshlrev_b32 v{X+2}, 2, v3
    v_mul_u32_u24 v5, 36, v3
    v_lshl_add_u32 v5, v4, 3, v5
    s_waitcnt lgkmcnt(0)
    """)
    O_ = OA[0]
    for i in range(11):
        k(f"v_add_f32 v{O_+i}, v{O_+i}, v{OA[1]+i}")
    k(f"""
    ds_bpermute_b32 v{X+3}, v{X+2}, v{O_+10}
    s_waitcnt lgkmcnt(0)
    v_rcp_f32 v{X+3}, v{X+3}
    s_nop 0
    """)
    for i in range(10):
        k(f"v_mul_f32 v{O_+i}, v{O_+i}, v{X+3}")
    for i in range(5):
        k(f"v_cvt_pk_bf16_f32 v{P+i}, v{O_+2*i}, v{O_+2*i+1}")
    k(f"""
    buffer_store_dwordx2 v[{P}:{P+1}], v5, s[36:39], s22 offen
    buffer_store_dwordx2 v[{P+2}:{P+3}], v5, s[36:39], s22 offen offset:16
    v_cmp_eq_u32 vcc, 0, v4
    s_and_saveexec_b64 s[42:43], vcc
    buffer_store_dword v{P+4}, v5, s[36:39], s22 offen offset:32
    s_mov_b64 exec, s[42:43]
    s_cmp_eq_u32 s50, 0
    s_cbranch_scc1 L_k3_end
    s_cmp_ge_u32 s3, 4
    s_cbranch_scc1 L_k3_end
    s_lshl_b32 s40, s51, 1
    s_mul_i32 s40, s40, {F*4}
    s_lshl_b32 s41, s77, 6
    s_add_u32 s40, s40, s41
    v_and_b32 v{WF}, 15, v1
    v_lshrrev_b32 v{WF+1}, 4, v1
    s_movk_i32 s41, {F*4}
    v_mul_lo_u32 v{WF+2}, v{WF}, s41
    v_lshl_add_u32 v{WF+2}, v{WF+1}, 4, v{WF+2}
    v_cmp_gt_u32 vcc, 2, v{WF}
    s_and_saveexec_b64 s[42:43], vcc
    buffer_store_dwordx4 v[{CA}:{CA+3}], v{WF+2}, s[12:15], s40 offen
    L_k3_end:
    s_endpgm
    """)
    return k
```
